```python
import torch

def _softmax(x, axis=-1):
    return torch.softmax(x, dim=axis)
def _gelu(x):
    return torch.nn.functional.gelu(x, approximate="tanh")
def _silu(x):
    return torch.nn.functional.silu(x)
def _sigmoid(x):
    return torch.sigmoid(x)
def _layernorm(x, axis=-1, eps=1e-5):
    m = x.mean(dim=axis, keepdim=True)
    v = x.var(dim=axis, keepdim=True, unbiased=False)
    return (x - m) / torch.sqrt(v + eps)
def _scatter_add(tgt, idx, src, axis=0):
    return tgt.clone().index_add_(axis, idx, src)
def _segment_sum(src, seg, n):
    out = torch.zeros((n,) + src.shape[1:], dtype=src.dtype)
    return out.index_add_(0, seg, src)
def _pad(x, pw):
    flat = tuple(v for pair in reversed(pw) for v in pair)
    return torch.nn.functional.pad(x, flat)

kernel_name = 'interleave_layers__ssm_conv_h3__dense_activation_relu__prompt'

def setup_inputs():

    _w = (lambda a: (lambda t: t.to(torch.bfloat16) if t.is_floating_point() else t)(torch.as_tensor(a)))
    def _A_setup():
        B, S, D = 1, 2048, 512
        ks = 4
        return {
            "q": _w((lambda *s: torch.randn(*s, dtype=torch.bfloat16) * 0.05)(B, S, D)),
            "k": _w((lambda *s: torch.randn(*s, dtype=torch.bfloat16) * 0.8)(B, S, D)),
            "v": _w((lambda *s: torch.randn(*s, dtype=torch.bfloat16) * 0.8)(B, S, D)),
            "shift_k": _w((lambda *s: torch.randn(*s, dtype=torch.bfloat16) * 0.8)(D, ks) * 0.5),
            "ssm_k": _w((lambda *s: torch.randn(*s, dtype=torch.bfloat16) * 0.8)(D, S) * (1.0 / S ** 0.5)),
            "ssm_D": _w((lambda *s: torch.randn(*s, dtype=torch.bfloat16) * 0.8)(D)),
        }
    _A_in = _A_setup()

    def _B_setup():
        B, S, D, Dff = 1, 2048, 512, 1376
        return {
            "x": _w((lambda *s: torch.randn(*s, dtype=torch.bfloat16) * 0.05)(B, S, D)),
            "w1": _w((lambda *s: torch.randn(*s, dtype=torch.bfloat16) * 0.1)(D, Dff)),
            "w2": _w((lambda *s: torch.randn(*s, dtype=torch.bfloat16) * 0.1)(Dff, D)),
        }
    _B_in = _B_setup()

    return {
        "A_q": _A_in["q"],
        "A_k": _A_in["k"],
        "A_v": _A_in["v"],
        "A_shift_k": _A_in["shift_k"],
        "A_ssm_k": _A_in["ssm_k"],
        "A_ssm_D": _A_in["ssm_D"],
        "B_x": _B_in["x"],
        "B_w1": _B_in["w1"],
        "B_w2": _B_in["w2"],
    }

def reference(A_q, A_k, A_v, A_shift_k, A_ssm_k, A_ssm_D, B_x, B_w1, B_w2):
    def _A_ref(q, k, v, shift_k, ssm_k, ssm_D):
        B, S, D = q.shape
        ks = shift_k.shape[-1]
        k_pad = _pad(k, ((0, 0), (ks - 1, 0), (0, 0)))
        k_shift = torch.zeros_like(k)
        for t in range(ks):
            k_shift = k_shift + k_pad[:, t:t + S, :] * shift_k[:, ks - 1 - t][None, None, :]
        kv = k_shift * v
        L = 2 * S
        kv_pad = _pad(kv, ((0, 0), (0, S), (0, 0)))
        kf_pad = _pad(ssm_k, ((0, 0), (0, S)))
        kv_f = (lambda x, axes=(-2,-1): torch.fft.rfft2(x.float(), dim=axes))(kv_pad[:, None, :, :], axes=(1, 2))
        kf_f = (lambda x, axes=(-2,-1): torch.fft.rfft2(x.float(), dim=axes))(kf_pad[:, None, :], axes=(1, 2))
        kf_f = (lambda x, *d: x.permute(*d))(kf_f, 1, 2, 0)
        y_f = kv_f * kf_f[None, :, :, :]
        y = (lambda x, s, axes=(-2,-1): torch.fft.irfft2(x, s=s, dim=axes).to(torch.bfloat16))(y_f, (1, L), axes=(1, 2))[:, 0, :S, :]
        y = y + kv * ssm_D[None, None, :]
        return q * y

    def _B_ref(x, w1, w2):
        h = torch.einsum("bsd,df->bsf", x, w1)
        zero = torch.zeros_like(h)
        h = torch.maximum(h, zero)
        return torch.einsum("bsf,fd->bsd", h, w2)

    x = A_q
    x = x + _A_ref(_layernorm(x, axis=-1), A_k, A_v, A_shift_k, A_ssm_k, A_ssm_D)
    x = x + _B_ref(_layernorm(x, axis=-1), B_w1, B_w2)
    x = x + _A_ref(_layernorm(x, axis=-1), A_k, A_v, A_shift_k, A_ssm_k, A_ssm_D)
    x = x + _B_ref(_layernorm(x, axis=-1), B_w1, B_w2)
    return x
```

```python
import re

def v(n, c=1):
    return f"v{n}" if c == 1 else f"v[{n}:{n+c-1}]"
def s(n, c=1):
    return f"s{n}" if c == 1 else f"s[{n}:{n+c-1}]"

_R = re.compile(r"^(-|abs\()?([vsa])(?:(\d+)|\[(\d+):(\d+)\])\)?$")
def regs(tok):
    tok = tok.strip()
    if tok in ("vcc",): return [("s", 106), ("s", 107)]
    if tok == "exec": return [("s", 126), ("s", 127)]
    if tok == "m0": return [("s", 124)]
    m = _R.match(tok)
    if not m: return []
    f = m.group(2)
    if m.group(3) is not None: return [(f, int(m.group(3)))]
    return [(f, i) for i in range(int(m.group(4)), int(m.group(5)) + 1)]

TRANS = ("v_exp_", "v_log_", "v_rcp_", "v_rsq_", "v_sqrt_", "v_sin_", "v_cos_")

class Ins:
    def __init__(self, text):
        self.text = text
        t = text.split(";")[0].strip()
        parts = t.split(None, 1)
        self.mn = parts[0]
        rest = parts[1] if len(parts) > 1 else ""
        ops, depth, cur = [], 0, ""
        for ch in rest:
            if ch in "[(": depth += 1
            if ch in "])": depth -= 1
            if ch == "," and depth == 0:
                ops.append(cur.strip()); cur = ""
            else: cur += ch
        if cur.strip(): ops.append(cur.strip())
        self.mods = ""
        if ops:
            last = ops[-1].split(None, 1)
            ops[-1] = last[0]
            self.mods = last[1] if len(last) > 1 else ""
        self.ops = ops
        mn = self.mn
        self.is_mfma = mn.startswith("v_mfma")
        self.is_valu = mn.startswith("v_") and not self.is_mfma
        self.is_ds = mn.startswith("ds_")
        self.is_vmem = mn.startswith(("buffer_", "global_"))
        self.is_salu = mn.startswith("s_")
        self.is_dpp = any(k in self.mods for k in ("quad_perm", "row_", "wave_"))
        self.is_trans = mn.startswith(TRANS)
        self.is_dot = mn.startswith("v_dot")
        self.is_perml = mn.startswith("v_permlane")
        self.is_lds_dma = self.is_vmem and re.search(r"\blds\b", self.mods) is not None
        R = [regs(o) for o in ops]
        d, u = [], []
        flat = lambda L: [x for l in L for x in l]
        if self.is_mfma:
            d = R[0]; u = flat(R[1:]); self.srcc = R[3]; self.srcab = R[1] + R[2]
            self.passes = 8 if "32x32" in mn else 4
        elif self.is_valu:
            if mn.startswith("v_cmp"):
                d = R[0]; u = flat(R[1:])
            elif mn.startswith(("v_permlane16_swap", "v_permlane32_swap", "v_swap")):
                d = flat(R); u = flat(R)
            elif mn.startswith(("v_add_co", "v_sub_co", "v_addc_co")):
                d = R[0] + R[1]; u = flat(R[2:])
            else:
                d = R[0]; u = flat(R[1:])
                if mn.startswith(("v_fmac", "v_dot2c", "v_pk_fmac")) or self.is_dpp: u = u + R[0]
        elif self.is_ds:
            if mn.startswith(("ds_read", "ds_bpermute", "ds_swizzle")) or "_rtn" in mn:
                d = R[0]; u = flat(R[1:])
            else: u = flat(R)
        elif self.is_vmem:
            if "store" in mn or self.is_lds_dma: u = flat(R)
            else: d = R[0]; u = flat(R[1:])
            self.wide_store = ("store" in mn and ("x4" in mn or "x3" in mn))
            self.store_data = []
            if self.wide_store: self.store_data = R[0] if mn.startswith("buffer") else R[1]
        elif self.is_salu:
            if mn.startswith(("s_cmp", "s_cbranch", "s_branch", "s_waitcnt", "s_nop", "s_barrier", "s_endpgm", "s_sleep", "s_setprio", "s_bitcmp")):
                u = flat(R)
            else:
                d = R[0] if R else []; u = flat(R[1:])
        self.defs, self.uses = set(d), set(u)

    def states(self):
        if self.mn == "s_nop": return int(self.ops[0], 0) + 1
        return 1

def need(p, c):
    n = 0
    pv = {r for r in p.defs if r[0] in "va"}
    ps = {r for r in p.defs if r[0] == "s"}
    if p.is_mfma:
        big = {4: 8, 8: 12}[p.passes]
        if c.is_mfma:
            if pv & set(c.srcab): n = max(n, big)
            cc = set(c.srcc)
            if pv & cc and not (cc == pv and c.passes == p.passes): n = max(n, {4: 6, 8: 10}[p.passes])
            if pv & c.defs and not (c.defs == pv and c.passes == p.passes): n = max(n, big)
        elif c.is_valu or c.is_ds or c.is_vmem:
            if pv & (c.uses | c.defs): n = max(n, big)
        if c.is_valu and set(p.srcc) & c.defs: n = max(n, {4: 3, 8: 7}[p.passes])
    if p.is_valu:
        if c.is_mfma and pv & c.uses: n = max(n, 3 if p.is_dot else 2)
        if c.is_valu and c.is_dpp and pv & c.uses: n = max(n, 2)
        if c.is_perml and pv & c.uses: n = max(n, 2)
        if c.mn.startswith(("v_readlane", "v_readfirstlane")) and pv & c.uses: n = max(n, 1)
        if p.is_trans and c.is_valu and not c.is_trans and pv & c.uses: n = max(n, 1)
        if p.is_trans and (c.is_ds or c.is_vmem) and pv & c.uses: n = max(n, 1)
        if p.is_dot and (pv & (c.uses | c.defs)):
            same = c.mn == p.mn and len(c.ops) >= 3 and not (pv & set(regs(c.ops[1]) + regs(c.ops[2])))
            if not same: n = max(n, 3)
        if ps:
            if c.is_vmem and ps & c.uses: n = max(n, 5)
            if c.is_valu and ps & c.uses: n = max(n, 4 if c.mn.startswith(("v_readlane", "v_writelane")) else 2)
            if c.is_valu and c.mn.startswith("v_cndmask") and ("s", 106) in ps: n = max(n, 2)
            if c.is_salu and ps & c.uses: n = max(n, 1)
        if "op_sel" in p.mods and c.is_valu and pv & c.uses: n = max(n, 1)
    if p.is_salu and ("s", 124) in p.defs and c.is_lds_dma: n = max(n, 1)
    if p.is_salu and ("s", 126) in p.defs and c.is_valu and c.is_dpp: n = max(n, 5)
    if p.is_vmem and getattr(p, "wide_store", False):
        if set(p.store_data) & c.defs: n = max(n, 2)
    return n

class Asm:
    def __init__(self):
        self.lines = []
        self.hist = []
        self.nlabel = 0
        self.nops = 0
    def raw(self, t):
        self.lines.append(t)
    def label(self, name):
        self.lines.append(name + ":")
    def newlabel(self, p="L"):
        self.nlabel += 1
        return f"{p}_{self.nlabel}"
    def __call__(self, text):
        for t in text.split("\n"):
            t = t.strip()
            if not t or t.startswith(";"):
                continue
            if t.endswith(":"):
                self.lines.append(t); continue
            c = Ins(t)
            dist, pad = 0, 0
            for p in reversed(self.hist):
                n = need(p, c)
                if n > dist: pad = max(pad, n - dist)
                dist += p.states()
                if dist >= 12: break
            while pad > 0:
                k = min(pad, 16)
                nop = Ins(f"s_nop {k-1}")
                self.lines.append("  " + nop.text); self.hist.append(nop); self.nops += 1
                pad -= k
            self.lines.append("  " + t)
            self.hist.append(c)
            if len(self.hist) > 40: self.hist = self.hist[-20:]
    def text(self):
        return "\n".join(self.lines) + "\n"
```

```python
import sys
from asmlib import Asm, v, s

NAME = "interleave_layers__ssm_conv_h3__dense_activation_relu__prompt"
PROFILE = "--prof" in sys.argv
STOP = 99
for a_ in sys.argv:
    if a_.startswith("--stop="): STOP = int(a_[7:])
OUT = [a_ for a_ in sys.argv[1:] if not a_.startswith("--")][0]

EPOCH = 0
FLAGA = 0x1000
FLAGW = 0x28000
FLAGX1 = 0x48000
FLAGH = 0x88000
FLAGX3 = 0x108000
QST = 0x148000
ST2 = 0x150000
ST3 = 0x190000
UQ = 0x200000
W2F = 0x600000
X1T = 0x800000
YT = 0xA00000
X3F = 0xC00000
HB = 0x1000000
DBG = 0x1C00000
OOB = 0x7F000000
XR = [0, 32768]
HZ = 65536
HZW = 22528
HBLK = 8320; EDATA = 32; ODATA = 4192
UBASE = HZ + 2 * HBLK; USZ = 4608
EX1 = UBASE + 2 * USZ
EX2 = HZ
STG = HZ + 42240
MISC = 157696
C_S0, C_S1, C_S2, C_S3, C_CONV = 0, 4, 8, 12, 16
C_XL = 32
C_XFREE = 48
C_EX = 64
C_EXDONE = 80
SX = 128
YL = 1024
LDS_BYTES = 163840
sWV, sX, sY, sC, sJ, sCP, sTAG, sTO = 3, 4, 5, 6, 7, 8, 9, 10
sW = 15
pQ, pK, pV, pSH, pH, pD, pW1, pW2, pOUT, pDBG, pWS = 16, 18, 20, 22, 24, 26, 30, 32, 34, 36, 38
rWS, rA, rB, rO = 40, 44, 48, 52
WS = s(rWS, 4)

a = Asm()

def srd(r, p, size):
    a(f"s_mov_b32 {s(r)}, {s(p)}\ns_mov_b32 {s(r+1)}, {s(p+1)}\ns_mov_b32 {s(r+2)}, {size}\ns_mov_b32 {s(r+3)}, 0x20000")

nstamp = [0]
def stamp(i):
    if PROFILE:
        a(f"s_memrealtime {s(70+2*i, 2)}\ns_waitcnt lgkmcnt(0)")

errcode = [0]
def timeout(lbl_done):
    errcode[0] += 1
    a(f"s_add_u32 {s(sTO)}, {s(sTO)}, 1\ns_cmp_gt_u32 {s(sTO)}, 0x20000\ns_cbranch_scc1 {lbl_done}")

def poll(vaddr, soff, vtmp, pre=None):
    L, D = a.newlabel("P"), a.newlabel("PD")
    a.label(L)
    a(f"buffer_load_dword {v(vtmp)}, {v(vaddr)}, {WS}, {soff} offen sc1")
    a("s_waitcnt vmcnt(0)")
    if pre:
        L2 = a.newlabel("PP")
        pre()
        a(f"s_branch {L2}")
        L = a.newlabel("P")
        a.label(L)
        a(f"buffer_load_dword {v(vtmp)}, {v(vaddr)}, {WS}, {soff} offen sc1")
        a("s_waitcnt vmcnt(0)")
        a.label(L2)
    a(f"v_cmp_ne_u32 vcc, {s(sTAG)}, {v(vtmp)}")
    a(f"s_cbranch_vccz {D}")
    timeout(D)
    a(f"s_branch {L}")
    a.label(D)

def flag(soff, vzero, vtag):
    a("s_mov_b64 exec, 1")
    a(f"buffer_store_dword {v(vtag)}, {v(vzero)}, {WS}, {soff} offen sc1")
    a("s_mov_b64 exec, -1")

def sig(off, vmisc, vone):
    a("s_mov_b64 exec, 1")
    a(f"ds_add_u32 {v(vmisc)}, {v(vone)} offset:{off}")
    a("s_mov_b64 exec, -1")

def lwait(off, target, vmisc, vtmp):
    L, D = a.newlabel("W"), a.newlabel("WD")
    a.label(L)
    a(f"ds_read_b32 {v(vtmp)}, {v(vmisc)} offset:{off}")
    a("s_waitcnt lgkmcnt(0)")
    a(f"v_cmp_gt_u32 vcc, {target}, {v(vtmp)}")
    a(f"s_cbranch_vccz {D}")
    timeout(D)
    a(f"s_branch {L}")
    a.label(D)

class Q:
    def __init__(self, name): self.name, self.q = name, []
    def issue(self, tag): self.q.append(tag)
    def wait(self, tag):
        if tag not in self.q: return
        idx = max(i for i, t in enumerate(self.q) if t == tag)
        n = len(self.q) - 1 - idx
        a(f"s_waitcnt {self.name}({n})")
        self.q = self.q[idx + 1:]
    def clear(self): self.q = []

def allreduce_pair(S1, S2, T):
    a(f"v_add_f32 {v(S1)}, {v(S1)}, {v(S1)} row_ror:8")
    a(f"v_add_f32 {v(S2)}, {v(S2)}, {v(S2)} row_ror:8")
    a(f"v_permlane16_swap_b32 {v(S1)}, {v(S2)}")
    a(f"v_add_f32 {v(S1)}, {v(S1)}, {v(S2)}")
    a(f"v_mov_b32 {v(T)}, {v(S1)}")
    a(f"v_permlane32_swap_b32 {v(S1)}, {v(T)}")
    a(f"v_add_f32 {v(S1)}, {v(S1)}, {v(T)}")

def unmix(S1, S2):
    a(f"v_mov_b32 {v(S2)}, {v(S1)}")
    a(f"v_permlane16_swap_b32 {v(S1)}, {v(S2)}")

def rstd(S1, S2, sINV, sEPS):
    a(f"v_mul_f32 {v(S1)}, {s(sINV)}, {v(S1)}")
    a(f"v_mul_f32 {v(S2)}, {s(sINV)}, {v(S2)}")
    a(f"v_fma_f32 {v(S2)}, -{v(S1)}, {v(S1)}, {v(S2)}")
    a(f"v_max_f32 {v(S2)}, 0, {v(S2)}")
    a(f"v_add_f32 {v(S2)}, {s(sEPS)}, {v(S2)}")
    a(f"v_rsq_f32 {v(S2)}, {v(S2)}")

def unpack(dst, src, hi):
    if hi: a(f"v_and_b32 {v(dst)}, 0xffff0000, {v(src)}")
    else: a(f"v_lshlrev_b32 {v(dst)}, 16, {v(src)}")

hdr = open("cdna_kernels/" + NAME + ".s.ref").read().split("; Override launch")[0]
a.raw(hdr.rstrip())
a.raw(f"; @launch grid=(256,1,1) block=(512,1,1) lds={LDS_BYTES}")
a.raw('.amdgcn_target "amdgcn-amd-amdhsa--gfx950"\n.text')
a.raw(f".globl {NAME}_kernel\n.p2align 8\n.type {NAME}_kernel,@function\n{NAME}_kernel:")
a("s_cmp_ge_u32 s2, 256\ns_cbranch_scc1 L_END")
a(f"s_load_dwordx16 {s(16,16)}, s[0:1], 0")
a(f"s_load_dwordx8 {s(32,8)}, s[0:1], 64")
if PROFILE: a(f"s_memrealtime {s(70,2)}")
a("s_getpc_b64 s[12:13]")
a.label("L_PC")
a("v_lshlrev_b32 v1, 6, v0")
a("v_min_u32 v1, L_CODE_END-L_PC-4, v1")
a("global_load_dword v255, v1, s[12:13]")
a("v_lshrrev_b32 v1, 6, v0")
a("v_and_b32 v0, 63, v0")
a(f"v_readfirstlane_b32 {s(sWV)}, v1")
a(f"s_and_b32 {s(sX)}, s2, 7\ns_lshr_b32 {s(sY)}, s2, 3")
a("v_and_b32 v1, 15, v0\nv_lshrrev_b32 v2, 4, v0")
a(f"s_mov_b32 {s(sTO)}, 0")
a(f"s_and_b32 {s(sW)}, {s(sWV)}, 3")
a(f"s_lshl_b32 {s(sCP)}, {s(sX)}, 5\ns_add_u32 {s(sCP)}, {s(sCP)}, {s(sY)}")
a(f"s_lshr_b32 s11, {s(sY)}, 3\ns_lshl_b32 {s(sC)}, {s(sX)}, 2\ns_add_u32 {s(sC)}, {s(sC)}, s11")
a(f"s_and_b32 {s(sJ)}, {s(sY)}, 7")
a(f"s_cmp_ge_u32 {s(sWV)}, 4\ns_cbranch_scc1 L_G1")

def epoch_barrier():
    a(f"s_load_dword {s(sTAG)}, {s(pWS,2)}, 0")
    a("s_waitcnt lgkmcnt(0)")
    a(f"s_mul_i32 {s(sTAG)}, {s(sTAG)}, 1664525\ns_add_u32 {s(sTAG)}, {s(sTAG)}, 1013904223")
    a("s_barrier")

def finish(role):
    if PROFILE:
        a("s_waitcnt vmcnt(0) lgkmcnt(0)")
        stamp(15)
        a(f"s_lshl_b32 s11, s2, 3\ns_add_u32 s11, s11, {s(sWV)}\ns_lshl_b32 s11, s11, 6\ns_add_u32 s11, s11, {DBG}")
        a("v_mov_b32 v1, 0")
        a("s_mov_b64 exec, 1")
        for i in range(16):
            a(f"v_mov_b32 v2, {s(70+2*i)}")
            a(f"buffer_store_dword v2, v1, {WS}, s11 offen offset:{4*i}")
        a("s_mov_b64 exec, -1")
    a("s_branch L_END")

vMISC, vONE, vTAG, vZERO, vL16 = 5, 6, 7, 8, 9
sSEL0, sSEL1, sD, sD0, sD1, sINV, sEPS, sONES = 56, 57, 58, 59, 60, 61, 62, 63
K0, V0, Q0, Wt, PT, OG = 48, 62, 70, 80, 88, 100
a("v_lshlrev_b32 v3, 12, v1\nv_lshl_add_u32 v3, v2, 3, v3")
a(f"s_lshl_b32 s11, {s(sY)}, 16\ns_lshl_b32 s12, {s(sX)}, 7\ns_add_u32 s11, s11, s12\ns_lshl_b32 s12, {s(sW)}, 5\ns_add_u32 s11, s11, s12")
a("v_add_u32 v3, s11, v3")
a("v_add_u32 v4, 0xfffff400, v3")
a(f"s_lshl_b32 s11, {s(sX)}, 9\ns_lshl_b32 s12, {s(sW)}, 7\ns_add_u32 s11, s11, s12")
a("v_lshlrev_b32 v10, 5, v2\nv_add_u32 v10, s11, v10")
a(f"v_lshlrev_b32 {v(vL16)}, 4, v0")
a(f"s_mov_b32 {s(rA+2)}, 0x200000\ns_mov_b32 {s(rA+3)}, 0x20000\ns_mov_b32 {s(rB+2)}, 0x200000\ns_mov_b32 {s(rB+3)}, 0x20000")
a(f"s_lshr_b32 s13, {s(sW)}, 1\ns_lshl_b32 s12, {s(sCP)}, 1\ns_add_u32 s12, s12, s13\ns_lshl_b32 s12, s12, 12")
a(f"s_and_b32 s14, {s(sW)}, 1\ns_lshl_b32 s11, s14, 1\ns_add_u32 s12, s12, s11")
a(f"s_mul_i32 s13, s13, {HBLK}\ns_mul_i32 s14, s14, {ODATA-EDATA}\ns_add_u32 s13, s13, s14\ns_add_u32 m0, s13, {HZ+EDATA}")
a("s_waitcnt lgkmcnt(0)")
a(f"s_mov_b32 {s(rA)}, {s(pK)}\ns_mov_b32 {s(rA+1)}, {s(pK+1)}")
vm = Q("vmcnt")
for i in range(7):
    if i < 3: a(f"buffer_load_dwordx2 {v(K0+2*i,2)}, v4, {s(rA,4)}, 0 offen offset:{i*1024}")
    else: a(f"buffer_load_dwordx2 {v(K0+2*i,2)}, v3, {s(rA,4)}, 0 offen offset:{(i-3)*1024}")
    vm.issue("k")
for i in range(2):
    a(f"global_load_dwordx4 {v(Wt+4*i,4)}, v10, {s(pSH,2)} offset:{16*i}"); vm.issue("k")
for i in range(4):
    a(f"global_load_dwordx2 {v(V0+2*i,2)}, v3, {s(pV,2)} offset:{i*1024}"); vm.issue("v")
for i in range(4):
    a(f"global_load_dwordx2 {v(Q0+2*i,2)}, v3, {s(pQ,2)} offset:{i*1024}"); vm.issue("q")
a(f"s_mov_b32 {s(rB)}, {s(pH)}\ns_mov_b32 {s(rB+1)}, {s(pH+1)}")
for i in range(4):
    a(f"buffer_load_dwordx4 {v(vL16)}, {s(rB,4)}, s12 offen offset:{i*1024} lds"); vm.issue("h")
srd(rWS, pWS, 0x10000000)
a(f"s_lshl_b32 s11, {s(sCP)}, 2")
a(f"s_load_dword {s(sD)}, {s(pD,2)}, s11")
a(f"s_mov_b32 {s(sSEL0)}, 0x05040100\ns_mov_b32 {s(sSEL1)}, 0x07060302")
a(f"s_mov_b32 {s(sINV)}, 0x3b000000\ns_mov_b32 {s(sEPS)}, 0x3727c5ac\ns_mov_b32 {s(sONES)}, 0x3f803f80")
a(f"v_mov_b32 {v(vMISC)}, {MISC}\nv_mov_b32 {v(vONE)}, 1\nv_mov_b32 {v(vZERO)}, 0")
srd(rO, pOUT, 0x200000)
epoch_barrier()
a(f"v_mov_b32 {v(vTAG)}, {s(sTAG)}")
a(f"s_lshl_b32 {s(sD0)}, {s(sD)}, 16\ns_and_b32 {s(sD1)}, {s(sD)}, 0xffff0000")
a("v_lshlrev_b32 v10, 15, v2\nv_lshl_add_u32 v10, v1, 4, v10")
a(f"s_lshl_b32 s11, {s(sX)}, 19\ns_lshl_b32 s12, {s(sW)}, 17\ns_add_u32 s11, s11, s12\ns_lshl_b32 s12, {s(sY)}, 8\ns_add_u32 s11, s11, s12\ns_add_u32 s11, s11, {UQ}")
vm.wait("k")
stamp(1)
KS = 116
for e in range(4):
    sel = s(sSEL1 if e & 1 else sSEL0)
    P = PT + 6 * (e & 1)
    for i in range(1, 7):
        a(f"v_perm_b32 {v(P+i-1)}, {v(K0+2*(i-1)+(e>>1))}, {v(K0+2*i+(e>>1))}, {sel}")
    for t in range(4):
        a(f"v_dot2_f32_bf16 {v(KS+4*e+t)}, {v(P+t)}, {v(Wt+2*e+1)}, 0")
    for t in range(4):
        a(f"v_dot2_f32_bf16 {v(KS+4*e+t)}, {v(P+t+2)}, {v(Wt+2*e)}, {v(KS+4*e+t)}")
vm.wait("v")
VF = 132
for e in range(4):
    for t in range(4): unpack(VF + 4 * e + t, V0 + 2 * t + (e >> 1), e & 1)
for i in range(16): a(f"v_mul_f32 {v(KS+i)}, {v(KS+i)}, {v(VF+i)}")
vm.wait("q")
for e in range(4):
    sel = s(sSEL1 if e & 1 else sSEL0)
    G = OG + 4 * e
    a(f"v_cvt_pk_bf16_f32 {v(G)}, {v(KS+4*e+3)}, {v(KS+4*e+2)}")
    a(f"v_cvt_pk_bf16_f32 {v(G+1)}, {v(KS+4*e+1)}, {v(KS+4*e)}")
    a(f"v_perm_b32 {v(G+2)}, {v(Q0+2+(e>>1))}, {v(Q0+(e>>1))}, {sel}")
    a(f"v_perm_b32 {v(G+3)}, {v(Q0+6+(e>>1))}, {v(Q0+4+(e>>1))}, {sel}")
    a(f"buffer_store_dwordx4 {v(G,4)}, v10, {WS}, s11 offen sc1"); vm.issue("uq")
    if e < 3: a("s_add_u32 s11, s11, 8192")
stamp(2)
sCH, sHALF = 64, 65
a(f"s_lshr_b32 {s(sCH)}, {s(sW)}, 1\ns_and_b32 {s(sHALF)}, {s(sW)}, 1")
a(f"s_mul_i32 s12, {s(sCH)}, {HBLK}\ns_add_u32 s12, s12, {HZ}")
a(f"s_mul_i32 s13, {s(sCH)}, {USZ}\ns_add_u32 s13, s13, {UBASE}")
vm.wait("h")
Lodd, Lpad = a.newlabel("HO"), a.newlabel("HP")
a(f"s_cmp_lg_u32 {s(sHALF)}, 0\ns_cbranch_scc1 {Lodd}")
a("v_mov_b32 v11, s12")
a(f"ds_read_b32 v12, v11 offset:{EDATA}")
a("v_and_b32 v13, 7, v0\nv_lshlrev_b32 v13, 2, v13\nv_add_u32 v13, s12, v13")
a(f"v_add_u32 v14, {ODATA-32}, v13")
a("v_cmp_gt_u32 vcc, 8, v0")
a("v_cndmask_b32 v13, v13, v14, vcc")
a("s_waitcnt lgkmcnt(0)")
a("v_lshlrev_b32 v12, 16, v12")
a("v_cmp_eq_u32 vcc, 7, v0")
a("v_cndmask_b32 v12, 0, v12, vcc")
a("s_mov_b64 exec, 0xffff")
a("ds_write_b32 v13, v12")
a("s_mov_b64 exec, -1")
a(f"s_branch {Lpad}")
a.label(Lodd)
a("v_lshlrev_b32 v13, 3, v0\nv_add_u32 v13, s13, v13")
a("v_mov_b32 v16, 0\nv_mov_b32 v17, 0")
a("ds_write_b64 v13, v[16:17] offset:4096")
a.label(Lpad)
sig(C_S0, vMISC, vONE)
a("v_lshl_add_u32 v11, v2, 3, v1")
a("v_and_b32 v12, 1, v1")
a("v_lshlrev_b32 v11, 1, v11")
a(f"v_add_u32 v13, {EDATA-30}, v11\nv_add_u32 v14, {ODATA-32}, v11")
a("v_cmp_eq_u32 vcc, 1, v12")
a("v_cndmask_b32 v11, v14, v13, vcc")
a(f"s_lshl_b32 s14, {s(sHALF)}, 8\ns_add_u32 s12, s12, s14")
a("v_add_u32 v11, s12, v11")
a(f"s_add_u32 s13, s13, s14\ns_add_u32 s13, s13, 480")
a("v_lshlrev_b32 v4, 4, v2\nv_lshlrev_b32 v12, 5, v1\nv_sub_u32 v4, v4, v12\nv_add_u32 v4, s13, v4")
lwait(C_S0, 4, vMISC, 12)
AF = 128
def afrag(rr, jp): return AF + 32 * rr + 4 * jp
def a_reads(jp2):
    for jp in (2 * jp2, 2 * jp2 + 1):
        for rr in range(4):
            o = 128 * (jp & 1) + 16 * rr
            a(f"ds_read2_b32 {v(afrag(rr,jp),2)}, v11 offset0:{o} offset1:{o+1}")
            a(f"ds_read2_b32 {v(afrag(rr,jp)+2,2)}, v11 offset0:{o+2} offset1:{o+3}")
    if jp2 < 3: a("v_add_u32 v11, 1024, v11")
a_reads(0); a_reads(1)
a(f"s_lshl_b32 s11, {s(sX)}, 2\ns_add_u32 s11, s11, {s(sW)}\ns_lshl_b32 s11, s11, 5\ns_add_u32 s11, s11, {s(sY)}\ns_lshl_b32 s11, s11, 7\ns_add_u32 s11, s11, {FLAGA}")
a("s_waitcnt vmcnt(0)"); vm.clear()
flag("s11", vZERO, vTAG)
stamp(3)
a_reads(2); a_reads(3)
if STOP >= 1:
    a("v_and_b32 v12, 3, v0\nv_and_b32 v13, 4, v0\nv_lshl_add_u32 v12, v13, 2, v12\nv_lshlrev_b32 v12, 7, v12")
    a(f"s_lshl_b32 s11, {s(sX)}, 2\ns_lshr_b32 s12, {s(sY)}, 3\ns_add_u32 s11, s11, s12\ns_lshl_b32 s11, s11, 5\ns_lshl_b32 s12, {s(sW)}, 2\ns_add_u32 s11, s11, s12\ns_lshl_b32 s11, s11, 7\ns_add_u32 s11, s11, {FLAGA}")
    a("v_lshl_add_u32 v3, v1, 2, v2")
    a("v_lshlrev_b32 v13, 4, v3")
    a("v_lshlrev_b32 v15, 5, v3")
    a(f"s_lshl_b32 s12, {s(sCP)}, 14\ns_lshl_b32 s13, {s(sW)}, 10\ns_add_u32 s12, s12, s13\ns_add_u32 s12, s12, {UQ}")
    a(f"s_lshl_b32 s13, {s(sW)}, 9\ns_sub_u32 s13, {UBASE+4088-2048}, s13")
    a("v_lshlrev_b32 v14, 3, v3\nv_sub_u32 v14, s13, v14")
    poll(12, "s11", 16)
    stamp(4)
    UQR, QS = 96, 112
    a("s_add_u32 s13, s12, 8192\ns_add_u32 s14, s12, 4096\ns_add_u32 s11, s13, 4096")
    for i, so in enumerate(("s12", "s13", "s14", "s11")):
        a(f"buffer_load_dwordx4 {v(UQR+4*i,4)}, v13, {WS}, {so} offen sc1"); vm.issue(f"u{i}")
    a(f"s_lshl_b32 s66, {s(sW)}, 11\ns_add_u32 s66, s66, {QST}\ns_add_u32 s67, s66, 8192")
    def qst_load(hi):
        for k in range(2):
            a(f"buffer_load_dwordx4 {v(QS+8*hi+4*k,4)}, v15, {WS}, {s(66+hi)} offen offset:{16*k} sc1"); vm.issue(f"qs{hi}")
    qst_load(0); qst_load(1)
    a(f"s_cmp_eq_u32 {s(sW)}, 3\ns_cselect_b32 s13, 19, 21")
    a("v_min_u32 v12, s13, v0\nv_lshlrev_b32 v12, 7, v12")
    a(f"s_mul_i32 s68, {s(sW)}, 22\ns_lshl_b32 s13, {s(sJ)}, 7\ns_add_u32 s13, s13, s68\ns_lshl_b32 s13, s13, 7\ns_add_u32 s69, s13, {FLAGW}")
    a(f"buffer_load_dword v18, v12, {WS}, s69 offen sc1"); vm.issue("fw")
    for i in range(4):
        vm.wait(f"u{i}")
        off = (i & 1) * USZ + (0 if i >= 2 else 2048)
        a(f"ds_write_b64 v14, {v(UQR+4*i,2)} offset:{off}")
    sig(C_S1, vMISC, vONE)
    lwait(C_S1, 4, vMISC, 16)
    stamp(5)
    ACC = 48
    lg = Q("lgkmcnt")
    def conv_stage(stage, after_rr=None):
        nq = 4 if stage == 0 else 8
        tiles = range(0, 4) if stage == 0 else range(4, 8)
        ring = [80, 84, 88, 92] + ([64, 68, 72, 76] if stage == 0 else [48, 52, 56, 60])
        seq = [(rr, q) for rr in range(4) for q in range(nq)]
        def rd(k):
            rr, q = seq[k]
            a(f"ds_read_b128 {v(ring[k%8],4)}, v4 offset:{3584-512*q+64*rr}"); lg.issue(k)
        for k in range(7): rd(k)
        first = set()
        for k, (rr, q) in enumerate(seq):
            if k + 7 < len(seq): rd(k + 7)
            lg.wait(k)
            for i in tiles:
                jp = i - q
                if jp < 0: continue
                c = v(ACC + 4 * i, 4) if i in first else "0"
                first.add(i)
                a(f"v_mfma_f32_16x16x32_bf16 {v(ACC+4*i,4)}, {v(afrag(rr,jp),4)}, {v(ring[k%8],4)}, {c}")
            if after_rr and q == nq - 1: after_rr(rr)
    a(f"s_lshl_b32 s11, {s(sW)}, 12\ns_add_u32 s11, s11, {HZ}\nv_add_u32 v16, s11, {v(vL16)}")
    a(f"s_lshl_b32 s11, {s(sW)}, 10\ns_add_u32 s11, s11, {HZ}\nv_add_u32 v17, s11, {v(vL16)}")
    a(f"s_and_b32 s11, {s(sCP)}, 4")
    a("v_and_b32 v19, 7, v3\nv_xor_b32 v19, s11, v19\nv_lshlrev_b32 v19, 4, v19\nv_lshrrev_b32 v13, 1, v1\nv_lshl_add_u32 v19, v13, 15, v19")
    def conv_epi(stage):
        EX = (EX1 if stage == 0 else EX2) - HZ
        src = ACC + 16 * stage
        for i in range(4):
            a(f"ds_write_b128 v16, {v(src+4*i,4)} offset:{EX+1024*i}")
        sig(C_S2 + 4 * stage, vMISC, vONE)
        vm.wait(f"qs{stage}") if any(t == f"qs{stage}" for t in vm.q) else None
        q0 = QS + 8 * stage
        L, D = a.newlabel("QS"), a.newlabel("QD")
        a.label(L)
        a(f"v_xor_b32 v20, {s(sTAG)}, {v(q0+1)}\nv_xor_b32 v21, {s(sTAG)}, {v(q0+3)}\nv_xor_b32 v22, {s(sTAG)}, {v(q0+5)}\nv_xor_b32 v23, {s(sTAG)}, {v(q0+7)}")
        a("v_or3_b32 v20, v20, v21, v22\nv_or_b32 v20, v20, v23")
        a("v_cmp_ne_u32 vcc, 0, v20")
        a(f"s_cbranch_vccz {D}")
        timeout(D)
        for k in range(2):
            a(f"buffer_load_dwordx4 {v(q0+4*k,4)}, v15, {WS}, {s(66+stage)} offen offset:{16*k} sc1")
        a("s_waitcnt vmcnt(0)")
        a(f"s_branch {L}")
        a.label(D)
        for t in range(4): a(f"v_and_b32 {v(q0+2*t+1)}, 0xffff0000, {v(q0+2*t)}")
        for t in range(4): a(f"v_rcp_f32 {v(q0+2*t+1)}, {v(q0+2*t+1)}")
        for t in range(4): a(f"v_lshlrev_b32 {v(q0+2*t)}, 16, {v(q0+2*t)}")
        for t in range(4): a(f"v_mul_f32 {v(q0+2*t)}, -{v(q0+2*t)}, {v(q0+2*t+1)}")
        UD, QF, NF = 20, 28, 36
        for e in range(2):
            g = UQR + 8 * stage + 4 * e
            for t in range(4):
                unpack(UD + 4 * e + t, g + (1 - (t >> 1)), 1 - (t & 1))
                unpack(QF + 4 * e + t, g + 2 + (t >> 1), t & 1)
        for e in range(2):
            for t in range(4):
                a(f"v_mul_f32 {v(UD+4*e+t)}, {s(sD0+e)}, {v(UD+4*e+t)}")
                a(f"v_fma_f32 {v(NF+4*e+t)}, {v(QF+4*e+t)}, {v(q0+2*t+1)}, {v(q0+2*t)}")
        a(f"s_lshl_b32 s11, {s(sW)}, 18\ns_lshl_b32 s12, {s(sCP)}, 7\ns_add_u32 s11, s11, s12\ns_add_u32 s11, s11, {X1T+stage*0x100000}\ns_add_u32 s12, s11, {YT-X1T}")
        lwait(C_S2 + 4 * stage, 4, vMISC, 44)
        for k in range(4):
            a(f"ds_read_b128 {v(src+4*k,4)}, v17 offset:{EX+4096*k}")
        for e in range(2):
            a(f"s_waitcnt lgkmcnt({2-2*e})")
            for t in range(4): a(f"v_add_f32 {v(UD+4*e+t)}, {v(UD+4*e+t)}, {v(src+8*e+t)}")
            for t in range(4): a(f"v_add_f32 {v(UD+4*e+t)}, {v(UD+4*e+t)}, {v(src+8*e+4+t)}")
            for t in range(4): a(f"v_fma_f32 {v(QF+4*e+t)}, {v(NF+4*e+t)}, {v(UD+4*e+t)}, {v(QF+4*e+t)}")
        for k in range(4): a(f"v_cvt_pk_bf16_f32 {v(44+k)}, {v(QF+2*k)}, {v(QF+2*k+1)}")
        a(f"buffer_store_dwordx4 {v(44,4)}, v19, {WS}, s11 offen sc1"); vm.issue("x1")
        for k in range(4): a(f"v_cvt_pk_bf16_f32 {v(NF+k)}, {v(UD+2*k)}, {v(UD+2*k+1)}")
        a(f"buffer_store_dwordx4 {v(NF,4)}, v19, {WS}, s12 offen sc1"); vm.issue("x1")
    def x1flag(stage):
        a(f"s_lshl_b32 s11, {s(sW)}, 8\ns_add_u32 s11, s11, {s(sCP)}\ns_lshl_b32 s11, s11, 7\ns_add_u32 s11, s11, {FLAGX1+stage*0x20000}")
        vm.wait("x1")
        flag("s11", vZERO, vTAG); vm.issue("fl")
    conv_stage(0)
    stamp(6)
    conv_epi(0)
    stamp(7)
    L, D = a.newlabel("FW"), a.newlabel("FD")
    vm.wait("fw")
    a.label(L)
    a(f"v_cmp_ne_u32 vcc, {s(sTAG)}, v18")
    a(f"s_cbranch_vccz {D}")
    timeout(D)
    a(f"buffer_load_dword v18, v12, {WS}, s69 offen sc1\ns_waitcnt vmcnt(0)")
    a(f"s_branch {L}")
    a.label(D)
    sW2a, sW2b = 68, 69
    a(f"s_mul_i32 s13, {s(sJ)}, 176\ns_add_u32 s13, s13, s68\ns_lshl_b32 s13, s13, 10\ns_add_u32 {s(sW2a)}, s13, {W2F}\ns_add_u32 {s(sW2b)}, {s(sW2a)}, {88*1024}")
    W2R = 80
    def w2load(i):
        st, ch = i >> 1, i & 1
        base = sW2b if ch else sW2a
        a(f"s_add_u32 s13, {s(base)}, {(st>>2)*4096}")
        if st >= 20:
            a(f"s_cmp_eq_u32 {s(sW)}, 3\ns_cselect_b32 s13, {OOB}, s13")
        a(f"buffer_load_dwordx4 {v(W2R+4*i,4)}, {v(vL16)}, {WS}, s13 offen offset:{(st&3)*1024} sc1"); vm.issue("w2")
    def after_rr(rr):
        if rr == 1: x1flag(0)
        if rr >= 1:
            for i in range(12 + 8 * (rr - 1), 12 + 8 * rr): w2load(i)
    conv_stage(1, after_rr)
    conv_epi(1)
    sig(C_CONV, vMISC, vONE)
    for i in range(36, 44): w2load(i)
    x1flag(1)
    for i in range(12): w2load(i)
    stamp(8)

if STOP >= 3:
    vXS, vYR, vYS, vEW, vER, vPH, vST, vX3, vOUT, vHR = 10, 11, 12, 13, 14, 15, 16, 17, 18, 19
    XRES, YR, RING, ACC2 = 20, 28, 36, 48
    vR = [3, 4]
    T0, T1, T2, T3 = 36, 37, 38, 39
    a(f"v_and_b32 {v(T0)}, 1, v0")
    a(f"v_bfe_u32 {v(T1)}, v0, 1, 1")
    a(f"v_bfe_u32 {v(T2)}, v0, 2, 1")
    a(f"v_bfe_u32 {v(T3)}, v0, 3, 1")
    a(f"v_lshl_add_u32 v40, v2, 1, {v(T1)}\nv_lshl_add_u32 v40, v40, 2, {v(T3)}")
    a(f"s_lshl_b32 s11, {s(sW)}, 1")
    a(f"v_add_u32 v41, s11, {v(T0)}\nv_lshlrev_b32 v42, 2, {v(T1)}\nv_xor_b32 v41, v41, v42")
    a(f"v_lshlrev_b32 {v(vXS)}, 7, v40\nv_lshl_add_u32 {v(vXS)}, v41, 4, {v(vXS)}\nv_lshl_add_u32 {v(vXS)}, {v(T2)}, 3, {v(vXS)}")
    a(f"s_lshl_b32 s12, {s(sW)}, 10\ns_add_u32 s64, s12, {MISC+YL}")
    a(f"v_lshlrev_b32 {v(vYR)}, 5, v40\nv_lshl_add_u32 {v(vYR)}, {v(T0)}, 4, {v(vYR)}\nv_lshl_add_u32 {v(vYR)}, {v(T2)}, 3, {v(vYR)}\nv_add_u32 {v(vYR)}, s64, {v(vYR)}")
    a(f"v_add_u32 v41, s11, {v(T0)}\nv_lshlrev_b32 v42, 2, {v(T3)}\nv_xor_b32 v41, v41, v42")
    a(f"v_lshrrev_b32 v42, 1, v0\nv_lshlrev_b32 {v(vYS)}, 7, v42\nv_lshl_add_u32 {v(vYS)}, v41, 4, {v(vYS)}")
    a("v_and_b32 v40, 31, v0\nv_and_b32 v41, 7, v0\nv_lshrrev_b32 v42, 5, v0\nv_lshl_add_u32 v42, v42, 3, v41")
    a(f"s_lshl_b32 s12, {s(sW)}, 13")
    a(f"v_lshlrev_b32 {v(vEW)}, 8, v40\nv_lshl_add_u32 {v(vEW)}, v42, 4, {v(vEW)}\nv_add_u32 {v(vEW)}, s12, {v(vEW)}")
    a("v_lshrrev_b32 v40, 3, v0\nv_xor_b32 v42, v40, v41\nv_bfe_u32 v43, v0, 4, 1\nv_lshl_add_u32 v42, v43, 3, v42")
    a(f"s_lshl_b32 s12, {s(sW)}, 11")
    a(f"v_lshlrev_b32 {v(vER)}, 8, v41\nv_lshl_add_u32 {v(vER)}, v42, 4, {v(vER)}\nv_add_u32 {v(vER)}, s12, {v(vER)}")
    a(f"v_lshlrev_b32 {v(vPH)}, 7, v41")
    a(f"v_lshlrev_b32 {v(vST)}, 4, v41\nv_lshl_add_u32 {v(vST)}, v43, 3, {v(vST)}")
    a(f"v_lshrrev_b32 v42, 5, v0\nv_and_b32 v43, 3, v40\nv_lshlrev_b32 {v(vX3)}, 11, v42\nv_lshl_add_u32 {v(vX3)}, v43, 8, {v(vX3)}\nv_lshl_add_u32 {v(vX3)}, v41, 4, {v(vX3)}")
    a(f"v_lshlrev_b32 {v(vOUT)}, 10, v41\nv_lshl_add_u32 {v(vOUT)}, v40, 4, {v(vOUT)}")
    a(f"s_mul_i32 s65, {s(sW)}, {HZW}\ns_add_u32 s65, s65, {HZ}")
    a(f"v_add_u32 {v(vHR)}, s65, {v(vL16)}")
    sYL, sHZ = 64, 65

    def prep(st):
        lwait(C_XL + 4 * st, 4, vMISC, T0)
        a(f"s_lshl_b32 s11, {s(sC)}, 15\ns_lshl_b32 s12, {s(sJ)}, 12\ns_add_u32 s11, s11, s12\ns_add_u32 s11, s11, {YT+st*0x100000}")
        a(f"s_mov_b32 m0, {s(sYL)}")
        a(f"buffer_load_dwordx4 {v(vYS)}, {WS}, s11 offen sc1 lds")
        a(f"v_add_u32 {v(T0)}, s12, {v(vXS)}")
        for hf in range(2):
            a(f"ds_read_b64_tr_b16 {v(XRES+4*st+2*hf,2)}, {v(T0)} offset:{XR[st]+256*hf}")
        for i in range(16):
            a(f"ds_read_b64_tr_b16 {v(ACC2+2*i,2)}, {v(vXS)} offset:{XR[st]+(i>>1)*4096+(i&1)*256}")
        for i in range(32):
            if i % 8 == 0: a(f"s_waitcnt lgkmcnt({12-i//2})")
            c1 = v(T0 + 2 * (i & 1)) if i >= 2 else "0"
            c2 = v(T1 + 2 * (i & 1)) if i >= 2 else "0"
            a(f"v_dot2_f32_bf16 {v(T0+2*(i&1))}, {v(ACC2+i)}, {s(sONES)}, {c1}")
            a(f"v_dot2_f32_bf16 {v(T1+2*(i&1))}, {v(ACC2+i)}, {v(ACC2+i)}, {c2}")
        sig(C_XFREE + 4 * st, vMISC, vONE)
        a(f"v_add_f32 {v(T0)}, {v(T0)}, {v(T2)}\nv_add_f32 {v(T1)}, {v(T1)}, {v(T3)}")
        allreduce_pair(T0, T1, T2); unmix(T0, T1); rstd(T0, T1, sINV, sEPS)
        a(f"v_mov_b32 {v(vR[st])}, {v(T1)}")
        a("s_waitcnt vmcnt(0)")
        for hf in range(2):
            a(f"ds_read_b64_tr_b16 {v(YR+4*st+2*hf,2)}, {v(vYR)} offset:{64*hf}")
        a("s_waitcnt lgkmcnt(0)")

    def pub_stats(P, base, st):
        for k in range(4):
            a(f"v_dot2_f32_bf16 {v(T0)}, {v(P+k)}, {s(sONES)}, {v(T0) if k else '0'}")
            a(f"v_dot2_f32_bf16 {v(T2)}, {v(P+k)}, {v(P+k)}, {v(T2) if k else '0'}")
        a(f"s_lshl_b32 s11, {s(sC)}, 2\ns_add_u32 s11, s11, {s(sW)}\ns_lshl_b32 s11, s11, 10\ns_lshl_b32 s12, {s(sJ)}, 7\ns_add_u32 s11, s11, s12\ns_add_u32 s11, s11, {base+st*0x20000}")
        allreduce_pair(T0, T2, T3)
        a(f"v_mov_b32 {v(T1)}, {v(vTAG)}")
        a("s_mov_b64 exec, 0xff00ff")
        a(f"buffer_store_dwordx2 {v(T0,2)}, {v(vST)}, {WS}, s11 offen sc1")
        a("s_mov_b64 exec, -1")

    def get_stats(base, st, pre=None):
        a(f"s_lshl_b32 s13, {s(sC)}, 2\ns_add_u32 s13, s13, {s(sW)}\ns_lshl_b32 s13, s13, 10\ns_add_u32 s13, s13, {base+st*0x20000}")
        L, D, L2 = a.newlabel("GS"), a.newlabel("GD"), a.newlabel("GP")
        if pre:
            a(f"buffer_load_dwordx4 {v(T0,4)}, {v(vL16)}, {WS}, s13 offen sc1\ns_waitcnt vmcnt(0)")
            pre()
            a(f"s_branch {L2}")
        a.label(L)
        a(f"buffer_load_dwordx4 {v(T0,4)}, {v(vL16)}, {WS}, s13 offen sc1\ns_waitcnt vmcnt(0)")
        a.label(L2)
        a(f"v_xor_b32 {v(T1)}, {s(sTAG)}, {v(T1)}\nv_xor_b32 {v(T3)}, {s(sTAG)}, {v(T3)}\nv_or_b32 {v(T1)}, {v(T1)}, {v(T3)}")
        a(f"v_cmp_ne_u32 vcc, 0, {v(T1)}")
        a(f"s_cbranch_vccz {D}")
        timeout(D)
        a(f"s_branch {L}")
        a.label(D)
        allreduce_pair(T0, T2, T3); unmix(T0, T2); rstd(T0, T2, sINV, sEPS)

    def gemm2(layer, st, pre=None):
        ls = layer * 2 + st
        a(f"s_lshl_b32 s11, {s(sC)}, 5\ns_lshl_b32 s12, {s(sW)}, 3\ns_add_u32 s11, s11, s12\ns_lshl_b32 s11, s11, 7\ns_add_u32 s14, s11, {FLAGH+ls*0x20000}")
        a(f"s_mul_i32 s12, {s(sC)}, 88\ns_mul_i32 s13, {s(sW)}, 22\ns_add_u32 s12, s12, s13\ns_lshl_b32 s12, s12, 10\ns_add_u32 s66, s12, {HB+ls*32*88*1024}")
        poll(vPH, "s14", T0, pre)
        stamp(9 + ls)
        a(f"s_mov_b32 m0, {s(sHZ)}")
        for i in range(22):
            if i == 20:
                a(f"s_cmp_eq_u32 {s(sW)}, 3\ns_cselect_b32 s66, {OOB}, s66")
            a(f"buffer_load_dwordx4 {v(vL16)}, {WS}, s66 offen offset:{(i&3)*1024} sc1 lds")
            if i & 3 == 3: a("s_add_u32 s66, s66, 4096\ns_add_u32 m0, m0, 4096")
        lg = Q("lgkmcnt")
        def rd(k):
            a(f"s_waitcnt vmcnt({21-k})")
            a(f"ds_read_b128 {v(RING+4*(k%3),4)}, {v(vHR)} offset:{1024*k}"); lg.issue(k)
        rd(0); rd(1)
        for k in range(22):
            if k + 2 < 22: rd(k + 2)
            lg.wait(k)
            for ch in range(2):
                c = v(ACC2 + 16 * ch, 16) if k else "0"
                a(f"v_mfma_f32_32x32x16_bf16 {v(ACC2+16*ch,16)}, {v(W2R+4*(2*k+ch),4)}, {v(RING+4*(k%3),4)}, {c}")
        lwait(C_XFREE + 4 * ls, 8 if layer == 0 else 4, vMISC, T0)
        for cg in range(8):
            K = (cg | (((cg >> 1) & 1) << 3)) * 16
            a(f"v_xor_b32 {v(T0+(cg&3))}, {K}, {v(vEW)}")
            a(f"ds_write_b128 {v(T0+(cg&3))}, {v(ACC2+4*cg,4)} offset:{XR[st]}")
        sig(C_EX + 4 * ls, vMISC, vONE)
        XF = 40
        for k in range(8): unpack(XF + k, XRES + 4 * st + (k >> 1), k & 1)
        a(f"v_xor_b32 {v(T1)}, 128, {v(vER)}")
        lwait(C_EX + 4 * ls, 4, vMISC, T0)
        for src in range(4):
            a(f"ds_read_b128 {v(ACC2+8*src,4)}, {v(vER)} offset:{XR[st]+8192*src}")
            a(f"ds_read_b128 {v(ACC2+8*src+4,4)}, {v(T1)} offset:{XR[st]+8192*src}")
        a("s_waitcnt lgkmcnt(4)")
        for k in range(8): a(f"v_add_f32 {v(ACC2+k)}, {v(ACC2+k)}, {v(ACC2+8+k)}")
        a("s_waitcnt lgkmcnt(0)")
        if layer == 0: sig(C_EXDONE + 4 * st, vMISC, vONE)
        for k in range(8): a(f"v_add_f32 {v(ACC2+16+k)}, {v(ACC2+16+k)}, {v(ACC2+24+k)}")
        for k in range(8): a(f"v_add_f32 {v(ACC2+k)}, {v(ACC2+k)}, {v(ACC2+16+k)}")
        for k in range(8): a(f"v_fma_f32 {v(XF+k)}, {v(ACC2+k)}, {v(vR[st])}, {v(XF+k)}")
        for k in range(4): a(f"v_cvt_pk_bf16_f32 {v(XRES+4*st+k)}, {v(XF+2*k)}, {v(XF+2*k+1)}")
        if layer == 0:
            pub_stats(XRES + 4 * st, ST2, st)
        else:
            a(f"s_lshl_b32 s11, {s(sC)}, 15\ns_lshl_b32 s12, {s(sW)}, 13\ns_add_u32 s11, s11, s12\ns_lshl_b32 s12, {s(sJ)}, 7\ns_add_u32 s11, s11, s12\ns_add_u32 s11, s11, {st*0x100000}")
            a(f"buffer_store_dwordx4 {v(XRES+4*st,4)}, {v(vOUT)}, {s(rO,4)}, s11 offen")

    def x3flag(st):
        a(f"s_lshl_b32 s11, {s(sC)}, 3\ns_add_u32 s11, s11, {s(sJ)}\ns_lshl_b32 s11, s11, 2\ns_add_u32 s11, s11, {s(sW)}\ns_lshl_b32 s11, s11, 7\ns_add_u32 s11, s11, {FLAGX3+st*0x20000}")
        flag("s11", vZERO, vTAG)

    def mk_x3(st, pre=None):
        XF, YF = ACC2, ACC2 + 8
        for k in range(8):
            unpack(XF + k, XRES + 4 * st + (k >> 1), k & 1)
            unpack(YF + k, YR + 4 * st + (k >> 1), k & 1)
        get_stats(ST2, st, pre)
        a(f"v_mul_f32 {v(T0)}, -{v(T0)}, {v(T2)}")
        for k in range(8): a(f"v_fma_f32 {v(ACC2+16+k)}, {v(XF+k)}, {v(T2)}, {v(T0)}")
        for k in range(8): a(f"v_fma_f32 {v(XF+k)}, {v(ACC2+16+k)}, {v(YF+k)}, {v(XF+k)}")
        for k in range(4): a(f"v_cvt_pk_bf16_f32 {v(XRES+4*st+k)}, {v(XF+2*k)}, {v(XF+2*k+1)}")
        a(f"s_lshl_b32 s11, {s(sC)}, 15\ns_lshl_b32 s12, {s(sJ)}, 12\ns_add_u32 s11, s11, s12\ns_lshr_b32 s12, {s(sW)}, 1\ns_lshl_b32 s12, s12, 10\ns_add_u32 s11, s11, s12")
        a(f"s_and_b32 s12, {s(sW)}, 1\ns_lshl_b32 s12, s12, 7\ns_add_u32 s11, s11, s12\ns_add_u32 s11, s11, {X3F+st*0x100000}")
        a(f"buffer_store_dwordx4 {v(XRES+4*st,4)}, {v(vX3)}, {WS}, s11 offen sc1")
        pub_stats(XRES + 4 * st, ST3, st)

    lwait(C_CONV, 4, vMISC, T0)
    prep(0); prep(1)
    gemm2(0, 0); gemm2(0, 1)
    if STOP >= 4:
        mk_x3(0)
        stamp(13)
        mk_x3(1, pre=lambda: x3flag(0))
        for st in range(2):
            get_stats(ST3, st, pre=(lambda: x3flag(1)) if st == 0 else None)
            a(f"v_mov_b32 {v(vR[st])}, {v(T2)}")
        gemm2(1, 0); gemm2(1, 1)
        Le = a.newlabel("EP")
        a(f"s_or_b32 s11, s2, {s(sW)}\ns_cmp_lg_u32 s11, 0\ns_cbranch_scc1 {Le}")
        a("s_mov_b64 exec, 1")
        a(f"buffer_store_dword {v(vTAG)}, {v(vZERO)}, {WS}, 0 offen")
        a("s_mov_b64 exec, -1")
        a.label(Le)
finish(0)

a.raw(".p2align 6")
a.label("L_G1")
a.hist = []
vMISC, vONE, vTAG, vZERO, vL16 = 3, 4, 5, 6, 7
CS, RING1, ACC1, W1R = 12, 24, 40, 64
sS3 = 56
sINV, sEPS, sONES = 61, 62, 63
a(f"v_mov_b32 {v(vMISC)}, {MISC}\nv_mov_b32 {v(vONE)}, 1\nv_mov_b32 {v(vZERO)}, 0")
a(f"v_lshlrev_b32 {v(vL16)}, 4, v0")
Li = a.newlabel("INIT")
a(f"s_cmp_lg_u32 {s(sW)}, 0\ns_cbranch_scc1 {Li}")
a("v_cmp_gt_u32 vcc, 8, v0")
a("v_cndmask_b32 v12, -1, v6, vcc")
a("v_mov_b32 v13, v12\nv_mov_b32 v14, v12\nv_mov_b32 v15, v12")
a(f"v_add_u32 v16, {MISC}, {v(vL16)}")
a("ds_write_b128 v16, v[12:15]")
a.label(Li)
a("v_lshrrev_b32 v12, 5, v0\nv_and_b32 v13, 31, v0\nv_lshlrev_b32 v8, 10, v12\nv_lshl_add_u32 v8, v13, 4, v8")
a(f"s_lshl_b32 s11, s2, 13\ns_lshl_b32 s12, {s(sW)}, 11\ns_add_u32 s11, s11, s12")
a("v_add_u32 v8, s11, v8")
a(f"s_lshl_b32 s57, {s(sW)}, 5\ns_add_u32 s57, s57, {s(sY)}")
a("s_min_u32 s12, s57, 85")
a(f"s_lshl_b32 s12, s12, 14\ns_lshl_b32 s13, {s(sX)}, 7\ns_add_u32 s58, s12, s13")
a("v_lshrrev_b32 v12, 3, v0\nv_and_b32 v13, 7, v0\nv_lshlrev_b32 v9, 10, v12\nv_lshl_add_u32 v9, v13, 4, v9")
a("s_mov_b32 s13, 10923\ns_movk_i32 s14, 2752")
for k in range(3):
    a(f"v_add_u32 v12, {64*k}, v0")
    a("v_mul_lo_u32 v13, v12, s13\nv_lshrrev_b32 v13, 16, v13")
    a("v_mul_u32_u24 v14, 6, v13\nv_sub_u32 v14, v12, v14")
    a(f"v_mul_lo_u32 {v(16+k)}, v13, s14\nv_lshl_add_u32 {v(16+k)}, v14, 4, {v(16+k)}")
a(f"s_mul_i32 s11, {s(sJ)}, 11\ns_min_u32 s11, s11, 75\ns_mul_i32 s12, {s(sW)}, 3\ns_add_u32 {s(sS3)}, s11, s12")
a(f"s_lshl_b32 s59, {s(sW)}, 13")
a(f"s_mul_i32 s60, {s(sW)}, 12288\ns_add_u32 s60, s60, {STG}")
a(f"s_mov_b32 {s(sINV)}, 0x3b000000\ns_mov_b32 {s(sEPS)}, 0x3727c5ac\ns_mov_b32 {s(sONES)}, 0x3f803f80")
a("s_waitcnt lgkmcnt(0)")
srd(rA, pW1, 512 * 2752)
srd(rB, pW2, 1376 * 1024)
srd(rWS, pWS, 0x10000000)
vm = Q("vmcnt")
QR = 40
for k in range(2):
    a(f"global_load_dwordx4 {v(QR+4*k,4)}, v8, {s(pQ,2)} offset:{512*k}"); vm.issue("q")
a("s_add_u32 m0, s59, 6144")
a(f"buffer_load_dwordx4 v9, {s(rB,4)}, s58 offen lds"); vm.issue("w2")
a("s_add_u32 m0, m0, 1024\ns_add_u32 s58, s58, 8192")
a(f"buffer_load_dwordx4 v9, {s(rB,4)}, s58 offen lds"); vm.issue("w2")
def zone(b):
    return [(59, XR[0]), (59, XR[1]), (60, 0), (60, 6144)][b & 3]
def w1_issue(b):
    sg, cst = zone(b)
    for p in range(2):
        pos = 2 * b + p
        a(f"s_lshl_b32 s11, {s(sW)}, 2\ns_add_u32 s11, s11, {pos}\ns_and_b32 s11, s11, 15\ns_mul_i32 s11, s11, {32*2752}\ns_lshl_b32 s12, {s(sS3)}, 5\ns_add_u32 s11, s11, s12")
        for k in range(3):
            a(f"s_add_u32 m0, {s(sg)}, {cst+3072*p+1024*k}")
            a(f"buffer_load_dwordx4 {v(16+k)}, {s(rA,4)}, s11 offen lds"); vm.issue(f"b{b}")
for b in range(4): w1_issue(b)
epoch_barrier()
a(f"v_mov_b32 {v(vTAG)}, {s(sTAG)}")
stamp(1)
vm.wait("q")
for k in range(8):
    a(f"v_dot2_f32_bf16 v12, {v(QR+k)}, {s(sONES)}, {'v12' if k else '0'}")
    a(f"v_dot2_f32_bf16 v13, {v(QR+k)}, {v(QR+k)}, {'v13' if k else '0'}")
for m in ("quad_perm:[1,0,3,2]", "quad_perm:[2,3,0,1]", "row_half_mirror", "row_mirror", "row_bcast:15 row_mask:0xa"):
    a(f"v_add_f32 v12, v12, v12 {m}")
    a(f"v_add_f32 v13, v13, v13 {m}")
a(f"v_mul_f32 v12, {s(sINV)}, v12\nv_mul_f32 v13, {s(sINV)}, v13")
a("v_fma_f32 v13, -v12, v12, v13\nv_max_f32 v13, 0, v13")
a("v_cvt_pk_bf16_f32 v13, v13, v13\nv_lshlrev_b32 v13, 16, v13")
a(f"v_add_f32 v13, {s(sEPS)}, v13")
a("v_cvt_pk_bf16_f32 v13, v13, v13\nv_lshlrev_b32 v13, 16, v13")
a("v_sqrt_f32 v13, v13")
a("v_cvt_pk_bf16_f32 v12, v12, v13")
a(f"v_mov_b32 v13, {v(vTAG)}")
a("v_lshrrev_b32 v14, 5, v0\nv_lshlrev_b32 v14, 3, v14")
a(f"s_lshl_b32 s11, s2, 6\ns_lshl_b32 s12, {s(sW)}, 4\ns_add_u32 s11, s11, s12\ns_add_u32 s11, s11, {QST}")
a("s_mov_b32 exec_lo, 0x80000000\ns_mov_b32 exec_hi, 0x80000000")
a(f"buffer_store_dwordx2 v[12:13], v14, {WS}, s11 offen sc1"); vm.issue("st")
a("s_mov_b64 exec, -1")
a("v_and_b32 v12, 3, v0\nv_bfe_u32 v13, v0, 2, 2\nv_bfe_u32 v14, v0, 4, 1\nv_lshrrev_b32 v15, 5, v0")
a("v_lshl_add_u32 v15, v15, 3, v13\nv_lshlrev_b32 v15, 7, v15\nv_lshl_add_u32 v15, v14, 5, v15\nv_lshl_add_u32 v15, v12, 3, v15")
a("v_add_u32 v15, s59, v15")
a("v_lshl_add_u32 v10, v2, 3, v13\nv_mul_u32_u24 v10, 96, v10\nv_lshl_add_u32 v10, v12, 3, v10")
a("v_add_u32 v11, s60, v10\nv_add_u32 v10, s59, v10")
vm.wait("w2")
for ch in range(2):
    for hf in range(2):
        a(f"ds_read_b64_tr_b16 {v(QR+4*ch+2*hf,2)}, v15 offset:{6144+64*ch+512*hf}")
a(f"s_mul_i32 s11, {s(sX)}, 176\ns_add_u32 s11, s11, s57\ns_lshl_b32 s11, s11, 10\ns_add_u32 s11, s11, {W2F}")
a(f"s_cmp_lt_u32 s57, 86\ns_cselect_b32 s11, s11, {OOB}\ns_add_u32 s12, s11, {88*1024}")
a("s_waitcnt lgkmcnt(0)")
a(f"buffer_store_dwordx4 {v(QR,4)}, {v(vL16)}, {WS}, s11 offen sc1"); vm.issue("st")
a(f"buffer_store_dwordx4 {v(QR+4,4)}, {v(vL16)}, {WS}, s12 offen sc1"); vm.issue("st")
def w1frag(pos, e): return W1R + (pos * 3 + e) * 4
for b in range(8):
    vm.wait(f"b{b}")
    if b == 4:
        a(f"s_lshl_b32 s11, {s(sX)}, 7\ns_add_u32 s11, s11, s57\ns_lshl_b32 s11, s11, 7\ns_add_u32 s11, s11, {FLAGW}")
        flag("s11", vZERO, vTAG); vm.issue("fl")
    sg, cst = zone(b)
    va = 10 if sg == 59 else 11
    for p in range(2):
        for e in range(3):
            for hf in range(2):
                a(f"ds_read_b64_tr_b16 {v(w1frag(2*b+p,e)+2*hf,2)}, {v(va)} offset:{cst+3072*p+32*e+384*hf}")
    a("s_waitcnt lgkmcnt(0)")
    if b + 4 < 8: w1_issue(b + 4)
stamp(2)
Lo = a.newlabel("ONES")
a(f"s_cmp_lg_u32 {s(sW)}, 3\ns_cbranch_scc1 {Lo}")
for pos in range(16):
    for k in range(4): a(f"v_mov_b32 {v(w1frag(pos,2)+k)}, {s(sONES)}")
a.label(Lo)
for k in range(4): a(f"v_mov_b32 {v(RING1+k)}, {s(sONES)}")
for pos in range(16):
    for e in range(3):
        a(f"v_mfma_f32_16x16x32_bf16 {v(CS+4*e,4)}, {v(w1frag(pos,e),4)}, {v(RING1,4)}, {v(CS+4*e,4) if pos else '0'}")
vT0, vT1, vSX, vCUR0, vCUR1, vPF = 8, 9, 10, 11, 1, 2
a("v_and_b32 v28, 3, v0\nv_bfe_u32 v29, v0, 2, 1\nv_bfe_u32 v30, v0, 3, 1\nv_and_b32 v31, 1, v2")
a("v_lshl_add_u32 v28, v31, 2, v28")
a(f"v_lshlrev_b32 {v(vT0)}, 9, v2\nv_lshl_add_u32 {v(vT0)}, v30, 7, {v(vT0)}\nv_lshl_add_u32 {v(vT0)}, v28, 4, {v(vT0)}\nv_lshl_add_u32 {v(vT0)}, v29, 3, {v(vT0)}")
a(f"v_xor_b32 {v(vT1)}, 64, {v(vT0)}")
a(f"v_lshlrev_b32 {v(vSX)}, 2, v1\nv_add_u32 {v(vSX)}, {MISC+SX}, {v(vSX)}")
for k in range(4):
    a(f"s_add_u32 s11, {s(sW)}, {k}\ns_and_b32 s11, s11, 3\ns_lshl_b32 {s(64+k)}, s11, 13")
a("s_mov_b32 s11, 0xbb000000")
for k in range(12): a(f"v_mul_f32 {v(CS+k)}, s11, {v(CS+k)}")
stamp(3)

def hflag(ls):
    a(f"s_lshl_b32 s11, {s(sC)}, 3\ns_add_u32 s11, s11, {s(sJ)}\ns_lshl_b32 s11, s11, 2\ns_add_u32 s11, s11, {s(sW)}\ns_lshl_b32 s11, s11, 7\ns_add_u32 s11, s11, {FLAGH+ls*0x20000}")
    flag("s11", vZERO, vTAG)

def gemm1(layer, st, pre=None):
    ls = layer * 2 + st
    TT = RING1
    if layer == 0:
        a(f"v_lshlrev_b32 {v(vPF)}, 7, v0")
        a(f"s_lshr_b32 s12, {s(sC)}, 3\ns_lshl_b32 s12, s12, 8\ns_lshl_b32 s13, {s(sW)}, 6\ns_add_u32 s12, s12, s13\ns_lshl_b32 s12, s12, 7\ns_add_u32 s14, s12, {FLAGX1+st*0x20000}")
        src = X1T
    else:
        a(f"v_and_b32 {v(vPF)}, 7, v0\nv_lshlrev_b32 {v(vPF)}, 7, {v(vPF)}")
        a(f"s_lshl_b32 s12, {s(sC)}, 5\ns_lshl_b32 s13, {s(sW)}, 3\ns_add_u32 s12, s12, s13\ns_lshl_b32 s12, s12, 7\ns_add_u32 s14, s12, {FLAGX3+st*0x20000}")
        src = X3F
    a(f"s_lshl_b32 s12, {s(sC)}, 15\ns_add_u32 s12, s12, s59\ns_add_u32 s68, s12, {src+st*0x100000}")
    if layer == 1:
        if pre:
            a("s_waitcnt vmcnt(0)"); pre(); pre = None
        lwait(C_EXDONE + 4 * st, 4, vMISC, TT)
    poll(vPF, "s14", TT, pre)
    stamp(4 + 2 * ls)
    a(f"s_add_u32 m0, s59, {XR[st]}")
    for i in range(8):
        a(f"buffer_load_dwordx4 {v(vL16)}, {WS}, s68 offen offset:{(i&3)*1024} sc1 lds")
        if i == 3: a("s_add_u32 s68, s68, 4096\ns_add_u32 m0, m0, 4096")
    a(f"s_mul_i32 s12, {s(sC)}, 88\ns_add_u32 s12, s12, {s(sS3)}\ns_lshl_b32 s12, s12, 10\ns_add_u32 s68, s12, {HB+ls*32*88*1024}")
    a(f"s_cmp_eq_u32 {s(sW)}, 3\ns_cselect_b32 s69, {OOB}, s68")
    def setchunk(c):
        if layer == 0:
            a(f"v_add_u32 {v(vCUR0)}, {s(64+c)}, {v(vT0)}\nv_add_u32 {v(vCUR1)}, {s(64+c)}, {v(vT1)}")
        else:
            a(f"v_add_u32 {v(vCUR0)}, {s(64+c)}, {v(vL16)}")
    setchunk(0)
    a("s_waitcnt vmcnt(0)")
    sig(C_XL + 4 * ls, vMISC, vONE)
    lg = Q("lgkmcnt"); lg.issue("sig")
    def rd(f):
        pos, t = f >> 1, f & 1
        if f % 8 == 0 and f:
            if f == 8:
                lg.wait("ctr") if "ctr" in lg.q else None
                D = a.newlabel("XD")
                a(f"v_cmp_gt_u32 vcc, 4, {v(vPF)}")
                a(f"s_cbranch_vccz {D}")
                lwait(C_XL + 4 * ls, 4, vMISC, vPF)
                a.label(D)
            setchunk(f // 8)
        dst = RING1 + 4 * (f & 3)
        if layer == 0:
            for hf in range(2):
                a(f"ds_read_b64_tr_b16 {v(dst+2*hf,2)}, {v(vCUR1 if t else vCUR0)} offset:{XR[st]+(pos&3)*2048+256*hf}"); lg.issue(f)
        else:
            a(f"ds_read_b128 {v(dst,4)}, {v(vCUR0)} offset:{XR[st]+((pos&3)*2+t)*1024}"); lg.issue(f)
    def mm(f, e):
        pos, t = f >> 1, f & 1
        acc = v(ACC1 + 8 * e + 4 * t, 4)
        a(f"v_mfma_f32_16x16x32_bf16 {acc}, {v(w1frag(pos,e),4)}, {v(RING1+4*(f&3),4)}, {acc if pos else '0'}")
    for f in range(4): rd(f)
    for f in range(28):
        lg.wait(f)
        for e in range(3): mm(f, e)
        if f == 2:
            a(f"ds_read_b32 {v(vPF)}, {v(vMISC)} offset:{C_XL+4*ls}"); lg.issue("ctr")
        rd(f + 4)
    for f in range(28, 32):
        lg.wait(f); mm(f, 2)
    sig(C_XFREE + 4 * ls, vMISC, vONE)
    for f in (28, 29):
        for e in range(2): mm(f, e)
    Ls = a.newlabel("SXW")
    a(f"s_cmp_lg_u32 {s(sW)}, 3\ns_cbranch_scc1 {Ls}")
    a(f"ds_write2_b32 {v(vSX)}, {v(ACC1+16)}, {v(ACC1+20)} offset0:{32*ls} offset1:{32*ls+16}")
    a.label(Ls)
    for f in (30, 31):
        for e in range(2): mm(f, e)
    L, D = a.newlabel("SXR"), a.newlabel("SXD")
    a.label(L)
    a(f"ds_read2_b32 {v(RING1,2)}, {v(vSX)} offset0:{32*ls} offset1:{32*ls+16}")
    a("s_waitcnt lgkmcnt(0)")
    a(f"v_max_u32 {v(RING1+2)}, {v(RING1)}, {v(RING1+1)}")
    a(f"v_cmp_eq_u32 vcc, -1, {v(RING1+2)}")
    a(f"s_cbranch_vccz {D}")
    timeout(D)
    a(f"s_branch {L}")
    a.label(D)
    for e in (2, 0, 1):
        P = RING1 + 4 + 4 * e
        for t in range(2):
            for r in range(4):
                x = ACC1 + 8 * e + 4 * t + r
                a(f"v_fma_f32 {v(x)}, {v(RING1+t)}, {v(CS+4*e+r)}, {v(x)}")
        for k in range(4): a(f"v_cvt_pk_bf16_f32 {v(P+k)}, {v(ACC1+8*e+2*k)}, {v(ACC1+8*e+2*k+1)}")
        for k in range(4): a(f"v_pk_max_i16 {v(P+k)}, {v(P+k)}, 0")
        a(f"v_permlane16_swap_b32 {v(P)}, {v(P+2)}")
        a(f"v_permlane16_swap_b32 {v(P+1)}, {v(P+3)}")
        a(f"buffer_store_dwordx4 {v(P,4)}, {v(vL16)}, {WS}, {'s69' if e == 2 else 's68'} offen offset:{1024*e} sc1")
    stamp(5 + 2 * ls)

if STOP >= 2:
    gemm1(0, 0)
    gemm1(0, 1, pre=lambda: hflag(0))
    if STOP >= 4:
        gemm1(1, 0, pre=lambda: hflag(1))
        gemm1(1, 1, pre=lambda: hflag(2))
        a("s_waitcnt vmcnt(0)"); hflag(3)
    else:
        a("s_waitcnt vmcnt(0)"); hflag(1)
finish(1)
a.label("L_END")
a("s_endpgm")
a.label("L_CODE_END")
a.raw(f""".section .rodata,"a"
.p2align 6
.amdhsa_kernel {NAME}_kernel
  .amdhsa_next_free_vgpr 256
  .amdhsa_next_free_sgpr 102
  .amdhsa_accum_offset 256
  .amdhsa_group_segment_fixed_size 0
  .amdhsa_kernarg_size 96
  .amdhsa_user_sgpr_count 2
  .amdhsa_user_sgpr_kernarg_segment_ptr 1
  .amdhsa_system_sgpr_workgroup_id_x 1
.end_amdhsa_kernel""")
open(OUT, "w").write(a.text())
print("wrote", OUT, "lines", len(a.lines), "auto nops", a.nops)
```

```python
import sys
from asmlib import Asm, v, s

NAME = "interleave_layers__ssm_conv_h3__dense_activation_relu__prompt"
PROFILE = "--prof" in sys.argv
OPT = {}
for a_ in sys.argv:
    if a_.startswith("--") and "=" in a_:
        k_, v_ = a_[2:].split("="); OPT[k_] = int(v_)
def opt(k, d): return OPT.get(k, d)
OUT = [a_ for a_ in sys.argv[1:] if not a_.startswith("--")][0]

FLAGA = 0x1000
FLAGH = 0x4000
FLAGX3 = 0x14000
FLAGW = 0x28000
FLAGX1 = 0x48000
QST = 0x148000
ST2 = 0x150000
ST3 = 0x190000
W2F = 0x600000
X1T = 0x800000
YT = 0xA00000
ARENA = 0x1000000
AX3 = 0xC0000
DBG = 0x1C00000
OOB = 0x7F000000
XR = [0, 32768]
HZ = 65536
HZW = 22528
HBLK = 8320; EDATA = 32; ODATA = 4192
UBASE = HZ + 2 * HBLK; USZ = 4608
EX1 = UBASE + 2 * USZ
EX2 = HZ
STG = HZ + 42240
W2S = 49152
MISC = 157696
C_S0, C_S1, C_S2, C_S3, C_CONV, C_UQI, C_XI = 0, 4, 8, 12, 16, 20, 24
C_XL = 32
C_XFREE = 48
C_EX = 64
C_EXDONE = 80
C_WL, C_WF = 88, 104
SX = 128
YL = 1024
LDS_BYTES = 163840
sCX, sXC = 0, 1
sWV, sX, sY, sC, sJ, sCP, sTAG, sTO = 3, 4, 5, 6, 7, 8, 9, 10
sW = 15
pQ, pK, pV, pSH, pH, pD, pW1, pW2, pOUT, pDBG, pWS = 16, 18, 20, 22, 24, 26, 30, 32, 34, 36, 38
sMODE, sAR = 28, 29
rWS, rA, rB, rO = 40, 44, 48, 52
WS = s(rWS, 4)

a = Asm()

def srd(r, p, size):
    a(f"s_mov_b32 {s(r)}, {s(p)}\ns_mov_b32 {s(r+1)}, {s(p+1)}\ns_mov_b32 {s(r+2)}, {size}\ns_mov_b32 {s(r+3)}, 0x20000")

STAMPS = [["start"], ["start"]]
ROLE = [0]
PSET = opt("pset", 0)
CLK = "s_memtime" if opt("cyc", 0) else "s_memrealtime"
def stamp(name, sets=(0,)):
    if not PROFILE: return
    if name != "end" and PSET not in sets: return
    L = STAMPS[ROLE[0]]
    i = 15 if name == "end" else len(L)
    assert i <= 15 and (name == "end" or i < 14), name
    if name != "end": L.append(name)
    a(f"{CLK} {s(70+2*i, 2)}\ns_waitcnt lgkmcnt(0)")

def timeout(lbl_done):
    if opt("sleep", 0): a(f"s_sleep {opt('sleep', 0)}")
    a(f"s_add_u32 {s(sTO)}, {s(sTO)}, 1\ns_cmp_gt_u32 {s(sTO)}, 0x20000\ns_cbranch_scc1 {lbl_done}")

def poll(vaddr, soff, vtmp, pre=None):
    L, D = a.newlabel("P"), a.newlabel("PD")
    a.label(L)
    a(f"buffer_load_dword {v(vtmp)}, {v(vaddr)}, {WS}, {soff} offen sc1")
    a("s_waitcnt vmcnt(0)")
    if pre:
        L2 = a.newlabel("PP")
        pre()
        a(f"s_branch {L2}")
        L = a.newlabel("P")
        a.label(L)
        a(f"buffer_load_dword {v(vtmp)}, {v(vaddr)}, {WS}, {soff} offen sc1")
        a("s_waitcnt vmcnt(0)")
        a.label(L2)
    a(f"v_cmp_ne_u32 vcc, {s(sTAG)}, {v(vtmp)}")
    a(f"s_cbranch_vccz {D}")
    timeout(D)
    a(f"s_branch {L}")
    a.label(D)

def lstore(body):
    P, D = a.newlabel("LP"), a.newlabel("LD")
    a(f"s_cmp_eq_u32 {s(sMODE)}, 32\ns_cbranch_scc1 {P}")
    body("sc1")
    a(f"s_branch {D}")
    a.label(P)
    body("")
    a.label(D)

def flag(soff, vzero, vtag, local=False):
    a("s_mov_b64 exec, 1")
    f = lambda m: a(f"buffer_store_dword {v(vtag)}, {v(vzero)}, {WS}, {soff} offen {m}")
    if local: lstore(f)
    else: f("sc1")
    a("s_mov_b64 exec, -1")

def sig(off, vmisc, vone):
    a("s_mov_b64 exec, 1")
    a(f"ds_add_u32 {v(vmisc)}, {v(vone)} offset:{off}")
    a("s_mov_b64 exec, -1")

def lwait(off, target, vmisc, vtmp):
    L, D = a.newlabel("W"), a.newlabel("WD")
    a.label(L)
    a(f"ds_read_b32 {v(vtmp)}, {v(vmisc)} offset:{off}")
    a("s_waitcnt lgkmcnt(0)")
    a(f"v_cmp_gt_u32 vcc, {target}, {v(vtmp)}")
    a(f"s_cbranch_vccz {D}")
    timeout(D)
    a(f"s_branch {L}")
    a.label(D)

def mode_addr(vaddr):
    a(f"s_lshl_b32 s11, {s(sX)}, 5")
    a(f"v_and_b32 {v(vaddr)}, 7, v0\nv_lshl_add_u32 {v(vaddr)}, {v(vaddr)}, 2, s11")
def mode_load(vdst, vaddr):
    a(f"global_load_dword {v(vdst)}, {v(vaddr)}, {s(pDBG,2)} sc1")
def mode_set(vsrc, vaddr=None, retries=0):
    L, D = a.newlabel("MS"), a.newlabel("MD")
    a(f"s_mov_b32 {s(sMODE)}, {32-retries-1}")
    a.label(L)
    a(f"v_cmp_ne_u32 vcc, {s(sXC)}, {v(vsrc)}")
    a(f"s_cbranch_vccz {D}_ok")
    if retries:
        a(f"s_add_u32 {s(sMODE)}, {s(sMODE)}, 1\ns_cmp_eq_u32 {s(sMODE)}, 31\ns_cbranch_scc1 {D}")
        mode_load(vsrc, vaddr)
        a("s_waitcnt vmcnt(0)")
        a(f"s_branch {L}")
    else:
        a(f"s_branch {D}")
    a.label(D + "_ok")
    a(f"s_mov_b32 {s(sMODE)}, {0 if opt('nolocal', 0) else 32}")
    a.label(D)

class Q:
    def __init__(self, name): self.name, self.q = name, []
    def issue(self, tag): self.q.append(tag)
    def wait(self, tag):
        if tag not in self.q: return
        idx = max(i for i, t in enumerate(self.q) if t == tag)
        n = len(self.q) - 1 - idx
        a(f"s_waitcnt {self.name}({n})")
        self.q = self.q[idx + 1:]
    def clear(self): self.q = []

def allreduce_pair(S1, S2, T):
    a(f"v_add_f32 {v(S1)}, {v(S1)}, {v(S1)} row_ror:8")
    a(f"v_add_f32 {v(S2)}, {v(S2)}, {v(S2)} row_ror:8")
    a(f"v_permlane16_swap_b32 {v(S1)}, {v(S2)}")
    a(f"v_add_f32 {v(S1)}, {v(S1)}, {v(S2)}")
    a(f"v_mov_b32 {v(T)}, {v(S1)}")
    a(f"v_permlane32_swap_b32 {v(S1)}, {v(T)}")
    a(f"v_add_f32 {v(S1)}, {v(S1)}, {v(T)}")

def unmix(S1, S2):
    a(f"v_mov_b32 {v(S2)}, {v(S1)}")
    a(f"v_permlane16_swap_b32 {v(S1)}, {v(S2)}")

def rstd(S1, S2, sINV, sEPS):
    a(f"v_mul_f32 {v(S1)}, {s(sINV)}, {v(S1)}")
    a(f"v_mul_f32 {v(S2)}, {s(sINV)}, {v(S2)}")
    a(f"v_fma_f32 {v(S2)}, -{v(S1)}, {v(S1)}, {v(S2)}")
    a(f"v_max_f32 {v(S2)}, 0, {v(S2)}")
    a(f"v_add_f32 {v(S2)}, {s(sEPS)}, {v(S2)}")
    a(f"v_rsq_f32 {v(S2)}, {v(S2)}")

def unpack(dst, src, hi):
    if hi: a(f"v_and_b32 {v(dst)}, 0xffff0000, {v(src)}")
    else: a(f"v_lshlrev_b32 {v(dst)}, 16, {v(src)}")

hdr = open("cdna_kernels/" + NAME + ".s.ref").read().split("; Override launch")[0]
a.raw(hdr.rstrip())
a.raw(f"; @launch grid=(256,1,1) block=(512,1,1) lds={LDS_BYTES}")
a.raw('.amdgcn_target "amdgcn-amd-amdhsa--gfx950"\n.text')
a.raw(f".globl {NAME}_kernel\n.p2align 8\n.type {NAME}_kernel,@function\n{NAME}_kernel:")
a("s_cmp_ge_u32 s2, 256\ns_cbranch_scc1 L_END")
a(f"s_load_dwordx16 {s(16,16)}, s[0:1], 0")
a(f"s_load_dwordx8 {s(32,8)}, s[0:1], 64")
if PROFILE: a(f"{CLK} {s(70,2)}")
a("s_getpc_b64 s[12:13]")
a.label("L_PC")
a("v_lshrrev_b32 v1, 6, v0")
a("v_and_b32 v0, 63, v0")
a(f"v_readfirstlane_b32 {s(sWV)}, v1")
a(f"s_and_b32 {s(sX)}, s2, 7\ns_lshr_b32 {s(sY)}, s2, 3")
a("v_and_b32 v1, 15, v0\nv_lshrrev_b32 v2, 4, v0")
a(f"s_lshl_b32 s11, {s(sY)}, 11")
a("v_lshl_add_u32 v3, v1, 7, s11")
a("v_min_u32 v3, L_CODE_END-L_PC-4, v3")
a(f"s_cmp_lg_u32 {s(sWV)}, 4\ns_cbranch_scc1 L_NOPF")
a("global_load_dword v255, v3, s[12:13]")
a.label("L_NOPF")
a(f"s_mov_b32 {s(sTO)}, 0")
a(f"s_and_b32 {s(sW)}, {s(sWV)}, 3")
a(f"s_lshl_b32 {s(sCP)}, {s(sX)}, 5\ns_add_u32 {s(sCP)}, {s(sCP)}, {s(sY)}")
a(f"s_lshr_b32 s11, {s(sY)}, 3\ns_lshl_b32 {s(sC)}, {s(sX)}, 2\ns_add_u32 {s(sC)}, {s(sC)}, s11")
a(f"s_and_b32 {s(sJ)}, {s(sY)}, 7")
a(f"s_cmp_ge_u32 {s(sWV)}, 4\ns_cbranch_scc1 L_G1")

def after_kernarg():
    a(f"s_lshr_b32 {s(sCX)}, {s(sY)}, 3")
    a(f"s_getreg_b32 {s(sXC)}, hwreg(HW_REG_XCC_ID, 0, 3)")
    a(f"s_or_b32 {s(sXC)}, {s(sXC)}, 0x80\ns_mul_i32 {s(sXC)}, {s(sXC)}, 0x01010101")
    a(f"s_lshl_b32 {s(sAR)}, {s(sX)}, 20\ns_add_u32 {s(sAR)}, {s(sAR)}, {ARENA}")

def epoch():
    a(f"s_load_dword {s(sTAG)}, {s(pWS,2)}, 0")
    a("s_waitcnt lgkmcnt(0)")
    a(f"s_mul_i32 {s(sTAG)}, {s(sTAG)}, 1664525\ns_add_u32 {s(sTAG)}, {s(sTAG)}, 1013904223")

def finish(role):
    if PROFILE:
        a("s_waitcnt vmcnt(0) lgkmcnt(0)")
        stamp("end")
        a(f"s_mov_b32 {s(70+28)}, {s(sMODE)}")
        a(f"s_lshl_b32 s11, s2, 3\ns_add_u32 s11, s11, {s(sWV)}\ns_lshl_b32 s11, s11, 6\ns_add_u32 s11, s11, {DBG}")
        a("v_mov_b32 v1, 0")
        a("s_mov_b64 exec, 1")
        for i in range(16):
            a(f"v_mov_b32 v2, {s(70+2*i)}")
            a(f"buffer_store_dword v2, v1, {WS}, s11 offen offset:{4*i}")
        a("s_mov_b64 exec, -1")
    a("s_branch L_END")

vMISC, vONE, vTAG, vZERO, vL16 = 5, 6, 7, 8, 9
sSEL0, sSEL1, sD, sD0, sD1, sINV, sEPS, sONES = 56, 57, 58, 59, 60, 61, 62, 63
K0, V0, Q0, Wt, PT, OG = 48, 62, 70, 80, 88, 100
a("v_lshlrev_b32 v3, 12, v2\nv_lshl_add_u32 v3, v1, 3, v3")
a(f"s_lshl_b32 s11, {s(sY)}, 16\ns_lshl_b32 s12, {s(sX)}, 7\ns_add_u32 s11, s11, s12\ns_lshl_b32 s12, {s(sW)}, 14\ns_add_u32 s11, s11, s12")
a("v_add_u32 v3, s11, v3")
a("v_add_u32 v4, 0xfffff400, v3")
a(f"s_lshl_b32 s11, {s(sX)}, 9")
a("v_lshl_add_u32 v10, v1, 5, s11")
a(f"v_lshlrev_b32 {v(vL16)}, 4, v0")
a(f"s_mov_b32 {s(rA+2)}, 0x200000\ns_mov_b32 {s(rA+3)}, 0x20000\ns_mov_b32 {s(rB+2)}, 0x200000\ns_mov_b32 {s(rB+3)}, 0x20000")
a(f"s_lshr_b32 s13, {s(sW)}, 1\ns_lshl_b32 s12, {s(sCP)}, 1\ns_add_u32 s12, s12, s13\ns_lshl_b32 s12, s12, 12")
a(f"s_and_b32 s14, {s(sW)}, 1\ns_lshl_b32 s11, s14, 1\ns_add_u32 s12, s12, s11")
a(f"s_mul_i32 s13, s13, {HBLK}\ns_mul_i32 s14, s14, {ODATA-EDATA}\ns_add_u32 s13, s13, s14\ns_add_u32 m0, s13, {HZ+EDATA}")
a("s_getreg_b32 s11, hwreg(HW_REG_XCC_ID, 0, 3)\ns_or_b32 s11, s11, 0x80")
a(f"v_mov_b32 v12, s11\nv_mov_b32 v11, {s(sCP)}")
a("s_waitcnt lgkmcnt(0)")
a("s_mov_b64 exec, 1")
a(f"global_store_byte v11, v12, {s(pDBG,2)}")
a("s_mov_b64 exec, -1")
a(f"s_mov_b32 {s(rA)}, {s(pK)}\ns_mov_b32 {s(rA+1)}, {s(pK+1)}")
vm = Q("vmcnt")
for i in (3, 4, 5, 6, 0, 1, 2):
    if i < 3: a(f"buffer_load_dwordx2 {v(K0+2*i,2)}, v4, {s(rA,4)}, 0 offen offset:{i*1024}")
    else: a(f"buffer_load_dwordx2 {v(K0+2*i,2)}, v3, {s(rA,4)}, 0 offen offset:{(i-3)*1024}")
    vm.issue("k")
for i in range(2):
    a(f"global_load_dwordx4 {v(Wt+4*i,4)}, v10, {s(pSH,2)} offset:{16*i}"); vm.issue("k")
for i in range(4):
    a(f"global_load_dwordx2 {v(V0+2*i,2)}, v3, {s(pV,2)} offset:{i*1024}"); vm.issue("v")
for i in range(4):
    a(f"global_load_dwordx2 {v(Q0+2*i,2)}, v3, {s(pQ,2)} offset:{i*1024}"); vm.issue("q")
a(f"s_mov_b32 {s(rB)}, {s(pH)}\ns_mov_b32 {s(rB+1)}, {s(pH+1)}")
def h_dma():
    for i in range(4):
        a(f"buffer_load_dwordx4 {v(vL16)}, {s(rB,4)}, s12 offen offset:{i*1024} lds"); vm.issue("h")
srd(rWS, pWS, 0x10000000)
a(f"s_lshl_b32 s11, {s(sCP)}, 2")
a(f"s_load_dword {s(sD)}, {s(pD,2)}, s11")
after_kernarg()
a(f"s_mov_b32 {s(sSEL0)}, 0x05040100\ns_mov_b32 {s(sSEL1)}, 0x07060302")
a(f"s_mov_b32 {s(sINV)}, 0x3b000000\ns_mov_b32 {s(sEPS)}, 0x3727c5ac\ns_mov_b32 {s(sONES)}, 0x3f803f80")
a(f"v_mov_b32 {v(vMISC)}, {MISC}\nv_mov_b32 {v(vONE)}, 1\nv_mov_b32 {v(vZERO)}, 0")
mode_addr(11)
srd(rO, pOUT, 0x200000)
epoch()
mode_load(12, 11); vm.issue("mode")
h_dma()
a("s_barrier")
a(f"v_mov_b32 {v(vTAG)}, {s(sTAG)}")
a(f"s_lshl_b32 {s(sD0)}, {s(sD)}, 16\ns_and_b32 {s(sD1)}, {s(sD)}, 0xffff0000")
a("v_lshlrev_b32 v10, 15, v1\nv_lshl_add_u32 v10, v2, 4, v10")
a(f"s_lshl_b32 s11, {s(sY)}, 8\ns_lshl_b32 s12, {s(sW)}, 6\ns_add_u32 s11, s11, s12\ns_add_u32 s11, s11, {s(sAR)}")
a("s_add_u32 s12, s11, 8192\ns_add_u32 s13, s11, 16384\ns_add_u32 s14, s11, 24576")
vm.wait("k")
stamp("k arrived")
KS = 116
for e in range(4):
    sel = s(sSEL1 if e & 1 else sSEL0)
    P = PT + 6 * (e & 1)
    for i in range(1, 7):
        a(f"v_perm_b32 {v(P+i-1)}, {v(K0+2*(i-1)+(e>>1))}, {v(K0+2*i+(e>>1))}, {sel}")
    for t in range(4):
        a(f"v_dot2_f32_bf16 {v(KS+4*e+t)}, {v(P+t)}, {v(Wt+2*e+1)}, 0")
    for t in range(4):
        a(f"v_dot2_f32_bf16 {v(KS+4*e+t)}, {v(P+t+2)}, {v(Wt+2*e)}, {v(KS+4*e+t)}")
vm.wait("v")
VF = 132
for e in range(4):
    for t in range(4): unpack(VF + 4 * e + t, V0 + 2 * t + (e >> 1), e & 1)
for i in range(16): a(f"v_mul_f32 {v(KS+i)}, {v(KS+i)}, {v(VF+i)}")
vm.wait("q")
for e in range(4):
    sel = s(sSEL1 if e & 1 else sSEL0)
    G = OG + 4 * e
    a(f"v_cvt_pk_bf16_f32 {v(G)}, {v(KS+4*e+3)}, {v(KS+4*e+2)}")
    a(f"v_cvt_pk_bf16_f32 {v(G+1)}, {v(KS+4*e+1)}, {v(KS+4*e)}")
    a(f"v_perm_b32 {v(G+2)}, {v(Q0+2+(e>>1))}, {v(Q0+(e>>1))}, {sel}")
    a(f"v_perm_b32 {v(G+3)}, {v(Q0+6+(e>>1))}, {v(Q0+4+(e>>1))}, {sel}")
vm.wait("mode")
mode_set(12, 11, retries=opt("retry", 12))
def uq_st(m):
    for e in range(4): a(f"buffer_store_dwordx4 {v(OG+4*e,4)}, v10, {WS}, {s(11+e)} offen {m}")
lstore(uq_st)
for e in range(4): vm.issue("uq")
stamp("uq stored")
sCH, sHALF = 64, 65
a(f"s_lshr_b32 {s(sCH)}, {s(sW)}, 1\ns_and_b32 {s(sHALF)}, {s(sW)}, 1")
a(f"s_mul_i32 s12, {s(sCH)}, {HBLK}\ns_add_u32 s12, s12, {HZ}")
a(f"s_mul_i32 s13, {s(sCH)}, {USZ}\ns_add_u32 s13, s13, {UBASE}")
vm.wait("h")
Lodd, Lpad = a.newlabel("HO"), a.newlabel("HP")
a(f"s_cmp_lg_u32 {s(sHALF)}, 0\ns_cbranch_scc1 {Lodd}")
a("v_mov_b32 v11, s12")
a(f"ds_read_b32 v12, v11 offset:{EDATA}")
a("v_and_b32 v13, 7, v0\nv_lshlrev_b32 v13, 2, v13\nv_add_u32 v13, s12, v13")
a(f"v_add_u32 v14, {ODATA-32}, v13")
a("v_cmp_gt_u32 vcc, 8, v0")
a("v_cndmask_b32 v13, v13, v14, vcc")
a("s_waitcnt lgkmcnt(0)")
a("v_lshlrev_b32 v12, 16, v12")
a("v_cmp_eq_u32 vcc, 7, v0")
a("v_cndmask_b32 v12, 0, v12, vcc")
a("s_mov_b64 exec, 0xffff")
a("ds_write_b32 v13, v12")
a("s_mov_b64 exec, -1")
a(f"s_branch {Lpad}")
a.label(Lodd)
a("v_lshlrev_b32 v13, 3, v0\nv_add_u32 v13, s13, v13")
a("v_mov_b32 v16, 0\nv_mov_b32 v17, 0")
a("ds_write_b64 v13, v[16:17] offset:4096")
a.label(Lpad)
sig(C_S0, vMISC, vONE)
a(f"s_bfe_u32 s11, {s(sY)}, 0x20002\ns_lshl_b32 s14, {s(sX)}, 2\ns_add_u32 s11, s11, s14\ns_lshl_b32 s11, s11, 3")
a(f"s_lshr_b32 s14, {s(sY)}, 4\ns_lshl_b32 s14, s14, 2\ns_add_u32 s11, s11, s14\ns_and_b32 s14, {s(sY)}, 3\ns_add_u32 s11, s11, s14")
a(f"s_lshl_b32 s11, s11, 2\ns_add_u32 s11, s11, {s(sW)}\ns_lshl_b32 s11, s11, 2\ns_add_u32 s11, s11, {FLAGA}")
a("v_lshl_add_u32 v11, v2, 3, v1")
a("v_and_b32 v12, 1, v1")
a("v_lshlrev_b32 v11, 1, v11")
a(f"v_add_u32 v13, {EDATA-30}, v11\nv_add_u32 v14, {ODATA-32}, v11")
a("v_cmp_eq_u32 vcc, 1, v12")
a("v_cndmask_b32 v11, v14, v13, vcc")
a(f"s_lshl_b32 s14, {s(sHALF)}, 8\ns_add_u32 s12, s12, s14")
a("v_add_u32 v11, s12, v11")
a(f"s_add_u32 s13, s13, s14\ns_add_u32 s13, s13, 480")
a("v_lshlrev_b32 v4, 4, v2\nv_lshlrev_b32 v12, 5, v1\nv_sub_u32 v4, v4, v12\nv_add_u32 v4, s13, v4")
a("s_waitcnt vmcnt(0)"); vm.clear()
flag("s11", vZERO, vTAG, local=True)
stamp("flagA")
lwait(C_S0, 4, vMISC, 12)
AF = 128
def afrag(rr, jp): return AF + 32 * rr + 4 * jp
def a_reads(jp2):
    for jp in (2 * jp2, 2 * jp2 + 1):
        for rr in range(4):
            o = 128 * (jp & 1) + 16 * rr
            a(f"ds_read2_b32 {v(afrag(rr,jp),2)}, v11 offset0:{o} offset1:{o+1}")
            a(f"ds_read2_b32 {v(afrag(rr,jp)+2,2)}, v11 offset0:{o+2} offset1:{o+3}")
    if jp2 < 3: a("v_add_u32 v11, 1024, v11")
a_reads(0)
a("v_and_b32 v12, 31, v0\nv_lshlrev_b32 v12, 2, v12")
a(f"s_lshl_b32 s11, {s(sX)}, 2\ns_add_u32 s11, s11, {s(sW)}\ns_lshl_b32 s11, s11, 7\ns_add_u32 s11, s11, {FLAGA}")
a("v_lshl_add_u32 v3, v1, 2, v2")
a("v_lshlrev_b32 v13, 4, v3")
a("v_lshlrev_b32 v15, 5, v3")
a(f"s_lshl_b32 s12, {s(sY)}, 14\ns_lshl_b32 s13, {s(sW)}, 10\ns_add_u32 s12, s12, s13\ns_add_u32 s12, s12, {s(sAR)}")
a(f"s_lshl_b32 s13, {s(sW)}, 9\ns_sub_u32 s13, {UBASE+4088-2048}, s13")
a("v_lshlrev_b32 v14, 3, v3\nv_sub_u32 v14, s13, v14")
poll(12, "s11", 16)
stamp("pollA done")
UQR, QS = 96, 112
a("s_add_u32 s13, s12, 8192\ns_add_u32 s14, s12, 4096\ns_add_u32 s11, s13, 4096")
for i, so in enumerate(("s12", "s13", "s14", "s11")):
    a(f"buffer_load_dwordx4 {v(UQR+4*i,4)}, v13, {WS}, {so} offen sc1"); vm.issue(f"u{i}")
a(f"s_lshl_b32 s66, {s(sW)}, 11\ns_add_u32 s66, s66, {QST}\ns_add_u32 s67, s66, 8192")
def qst_load(hi):
    for k in range(2):
        a(f"buffer_load_dwordx4 {v(QS+8*hi+4*k,4)}, v15, {WS}, {s(66+hi)} offen offset:{16*k} sc1"); vm.issue(f"qs{hi}")
qst_load(0); qst_load(1)
sig(C_UQI, vMISC, vONE)
a_reads(1)
for i in range(4):
    vm.wait(f"u{i}")
    off = (i & 1) * USZ + (0 if i >= 2 else 2048)
    a(f"ds_write_b64 v14, {v(UQR+4*i,2)} offset:{off}")
sig(C_S1, vMISC, vONE)
ACC = 48
lg = Q("lgkmcnt")
def conv_stage(stage, after_rr=None, extra=None):
    nq = 4 if stage == 0 else 8
    tiles = range(0, 4) if stage == 0 else range(4, 8)
    ring = [80, 84, 88, 92] + ([64, 68, 72, 76] if stage == 0 else [48, 52, 56, 60])
    seq = [(rr, q) for rr in range(4) for q in range(nq)]
    def rd(k):
        rr, q = seq[k]
        a(f"ds_read_b128 {v(ring[k%8],4)}, v4 offset:{3584-512*q+64*rr}"); lg.issue(k)
    for k in range(7): rd(k)
    first = set()
    for k, (rr, q) in enumerate(seq):
        if k + 7 < len(seq): rd(k + 7)
        lg.wait(k)
        for i in tiles:
            jp = i - q
            if jp < 0: continue
            c = v(ACC + 4 * i, 4) if i in first else "0"
            first.add(i)
            a(f"v_mfma_f32_16x16x32_bf16 {v(ACC+4*i,4)}, {v(afrag(rr,jp),4)}, {v(ring[k%8],4)}, {c}")
        if after_rr and q == nq - 1: after_rr(rr)
a(f"s_lshl_b32 s11, {s(sW)}, 12\ns_add_u32 s11, s11, {HZ}\nv_add_u32 v16, s11, {v(vL16)}")
a(f"s_lshl_b32 s11, {s(sW)}, 10\ns_add_u32 s11, s11, {HZ}\nv_add_u32 v17, s11, {v(vL16)}")
a(f"s_and_b32 s11, {s(sCP)}, 4")
a("v_and_b32 v19, 7, v3\nv_xor_b32 v19, s11, v19\nv_lshlrev_b32 v19, 4, v19\nv_lshrrev_b32 v13, 1, v1\nv_lshl_add_u32 v19, v13, 15, v19")
lwait(C_S1, 4, vMISC, 18)
stamp("u in lds")
def conv_epi(stage):
    EX = (EX1 if stage == 0 else EX2) - HZ
    src = ACC + 16 * stage
    for i in range(4):
        a(f"ds_write_b128 v16, {v(src+4*i,4)} offset:{EX+1024*i}")
    sig(C_S2 + 4 * stage, vMISC, vONE)
    vm.wait(f"qs{stage}")
    q0 = QS + 8 * stage
    L, D = a.newlabel("QS"), a.newlabel("QD")
    a.label(L)
    a(f"v_xor_b32 v20, {s(sTAG)}, {v(q0+1)}\nv_xor_b32 v21, {s(sTAG)}, {v(q0+3)}\nv_xor_b32 v22, {s(sTAG)}, {v(q0+5)}\nv_xor_b32 v23, {s(sTAG)}, {v(q0+7)}")
    a("v_or3_b32 v20, v20, v21, v22\nv_or_b32 v20, v20, v23")
    a("v_cmp_ne_u32 vcc, 0, v20")
    a(f"s_cbranch_vccz {D}")
    timeout(D)
    for k in range(2):
        a(f"buffer_load_dwordx4 {v(q0+4*k,4)}, v15, {WS}, {s(66+stage)} offen offset:{16*k} sc1")
    a("s_waitcnt vmcnt(0)")
    a(f"s_branch {L}")
    a.label(D)
    for t in range(4): a(f"v_and_b32 {v(q0+2*t+1)}, 0xffff0000, {v(q0+2*t)}")
    for t in range(4): a(f"v_rcp_f32 {v(q0+2*t+1)}, {v(q0+2*t+1)}")
    for t in range(4): a(f"v_lshlrev_b32 {v(q0+2*t)}, 16, {v(q0+2*t)}")
    for t in range(4): a(f"v_mul_f32 {v(q0+2*t)}, -{v(q0+2*t)}, {v(q0+2*t+1)}")
    UD, QF, NF = 20, 28, 36
    for e in range(2):
        g = UQR + 8 * stage + 4 * e
        for t in range(4):
            unpack(UD + 4 * e + t, g + (1 - (t >> 1)), 1 - (t & 1))
            unpack(QF + 4 * e + t, g + 2 + (t >> 1), t & 1)
    for e in range(2):
        for t in range(4):
            a(f"v_mul_f32 {v(UD+4*e+t)}, {s(sD0+e)}, {v(UD+4*e+t)}")
            a(f"v_fma_f32 {v(NF+4*e+t)}, {v(QF+4*e+t)}, {v(q0+2*t+1)}, {v(q0+2*t)}")
    a(f"s_lshl_b32 s11, {s(sW)}, 18\ns_lshl_b32 s12, {s(sCP)}, 7\ns_add_u32 s11, s11, s12\ns_add_u32 s11, s11, {X1T+stage*0x100000}\ns_add_u32 s12, s11, {YT-X1T}")
    lwait(C_S2 + 4 * stage, 4, vMISC, 44)
    for k in range(4):
        a(f"ds_read_b128 {v(src+4*k,4)}, v17 offset:{EX+4096*k}")
    for e in range(2):
        a(f"s_waitcnt lgkmcnt({2-2*e})")
        for t in range(4): a(f"v_add_f32 {v(UD+4*e+t)}, {v(UD+4*e+t)}, {v(src+8*e+t)}")
        for t in range(4): a(f"v_add_f32 {v(UD+4*e+t)}, {v(UD+4*e+t)}, {v(src+8*e+4+t)}")
        for t in range(4): a(f"v_fma_f32 {v(QF+4*e+t)}, {v(NF+4*e+t)}, {v(UD+4*e+t)}, {v(QF+4*e+t)}")
    for k in range(4): a(f"v_cvt_pk_bf16_f32 {v(44+k)}, {v(QF+2*k)}, {v(QF+2*k+1)}")
    a(f"buffer_store_dwordx4 {v(44,4)}, v19, {WS}, s11 offen sc1"); vm.issue("x1")
    for k in range(4): a(f"v_cvt_pk_bf16_f32 {v(NF+k)}, {v(UD+2*k)}, {v(UD+2*k+1)}")
    a(f"buffer_store_dwordx4 {v(NF,4)}, v19, {WS}, s12 offen sc1"); vm.issue("x1")
def x1flag(stage):
    a(f"s_lshl_b32 s11, {s(sW)}, 8\ns_add_u32 s11, s11, {s(sCP)}\ns_lshl_b32 s11, s11, 7\ns_add_u32 s11, s11, {FLAGX1+stage*0x20000}")
    vm.wait("x1")
    flag("s11", vZERO, vTAG); vm.issue("fl")
conv_stage(0)
stamp("conv1 mfma")
conv_epi(0)
stamp("x1A stored")
a_reads(2); a_reads(3)
a("s_waitcnt lgkmcnt(0)")
sig(C_S0, vMISC, vONE)
def after_rr(rr):
    if rr == opt("x1f", 0): x1flag(0)
conv_stage(1, after_rr)
lwait(C_S0, 8, vMISC, 18)
conv_epi(1)
sig(C_CONV, vMISC, vONE)
sROT, sW2a = 68, 69
a(f"s_lshl_b32 s11, {s(sCX)}, 1\ns_add_u32 s11, s11, {s(sJ)}\ns_mul_i32 s11, s11, 11\ns_lshr_b32 s11, s11, 2")
a(f"s_cmp_ge_u32 s11, 22\ns_cselect_b32 s12, 22, 0\ns_sub_u32 {s(sROT)}, s11, s12")
a("v_min_u32 v12, 21, v0\nv_lshlrev_b32 v12, 7, v12")
a(f"s_mul_i32 s14, {s(sW)}, 22\ns_lshl_b32 s13, {s(sJ)}, 7\ns_add_u32 s13, s13, s14\ns_lshl_b32 s13, s13, 7\ns_add_u32 s13, s13, {FLAGW}")
a(f"s_mul_i32 s12, {s(sJ)}, 176\ns_add_u32 s12, s12, s14\ns_lshl_b32 s12, s12, 10\ns_add_u32 {s(sW2a)}, s12, {W2F}")
mode_addr(11)
mode_load(13, 11)
poll(12, "s13", 18, pre=lambda: (vm.clear(), x1flag(1)))
mode_set(13)
stamp("conv done")
if opt("w2wait", 1): lwait(C_XI, 4, vMISC, 18)
W2R = 80
a(f"s_lshl_b32 s11, {s(sROT)}, 10")
for p in range(22):
    a(f"s_add_u32 s12, {s(sW2a)}, s11\ns_add_u32 s13, s12, {88*1024}")
    a(f"buffer_load_dwordx4 {v(W2R+8*p,4)}, {v(vL16)}, {WS}, s12 offen sc1")
    a(f"buffer_load_dwordx4 {v(W2R+8*p+4,4)}, {v(vL16)}, {WS}, s13 offen sc1")
    if p < 21: a(f"s_add_u32 s11, s11, 1024\ns_cmp_eq_u32 s11, {22*1024}\ns_cselect_b32 s11, 0, s11")

vXS, vYR, vYS, vEW, vER, vPH, vST, vX3, vOUT, vHR = 10, 11, 12, 13, 14, 15, 16, 17, 18, 19
XRES, YR, RING, ACC2 = 20, 28, 36, 48
vR = [3, 4]
T0, T1, T2, T3 = 36, 37, 38, 39
a(f"v_and_b32 {v(T0)}, 1, v0")
a(f"v_bfe_u32 {v(T1)}, v0, 1, 1")
a(f"v_bfe_u32 {v(T2)}, v0, 2, 1")
a(f"v_bfe_u32 {v(T3)}, v0, 3, 1")
a(f"v_lshl_add_u32 v40, v2, 1, {v(T1)}\nv_lshl_add_u32 v40, v40, 2, {v(T3)}")
a(f"s_lshl_b32 s11, {s(sW)}, 1")
a(f"v_add_u32 v41, s11, {v(T0)}\nv_lshlrev_b32 v42, 2, {v(T1)}\nv_xor_b32 v41, v41, v42")
a(f"v_lshlrev_b32 {v(vXS)}, 7, v40\nv_lshl_add_u32 {v(vXS)}, v41, 4, {v(vXS)}\nv_lshl_add_u32 {v(vXS)}, {v(T2)}, 3, {v(vXS)}")
a(f"s_lshl_b32 s12, {s(sW)}, 10\ns_add_u32 s64, s12, {MISC+YL}")
a(f"v_lshlrev_b32 {v(vYR)}, 5, v40\nv_lshl_add_u32 {v(vYR)}, {v(T0)}, 4, {v(vYR)}\nv_lshl_add_u32 {v(vYR)}, {v(T2)}, 3, {v(vYR)}\nv_add_u32 {v(vYR)}, s64, {v(vYR)}")
a(f"v_add_u32 v41, s11, {v(T0)}\nv_lshlrev_b32 v42, 2, {v(T3)}\nv_xor_b32 v41, v41, v42")
a(f"v_lshrrev_b32 v42, 1, v0\nv_lshlrev_b32 {v(vYS)}, 7, v42\nv_lshl_add_u32 {v(vYS)}, v41, 4, {v(vYS)}")
a("v_and_b32 v40, 31, v0\nv_and_b32 v41, 7, v0\nv_lshrrev_b32 v42, 5, v0\nv_lshl_add_u32 v42, v42, 3, v41")
a(f"s_lshl_b32 s12, {s(sW)}, 13")
a(f"v_lshlrev_b32 {v(vEW)}, 8, v40\nv_lshl_add_u32 {v(vEW)}, v42, 4, {v(vEW)}\nv_add_u32 {v(vEW)}, s12, {v(vEW)}")
a("v_lshrrev_b32 v40, 3, v0\nv_xor_b32 v42, v40, v41\nv_bfe_u32 v43, v0, 4, 1\nv_lshl_add_u32 v42, v43, 3, v42")
a(f"s_lshl_b32 s12, {s(sW)}, 11")
a(f"v_lshlrev_b32 {v(vER)}, 8, v41\nv_lshl_add_u32 {v(vER)}, v42, 4, {v(vER)}\nv_add_u32 {v(vER)}, s12, {v(vER)}")
a(f"v_lshlrev_b32 {v(vPH)}, 2, v41")
a(f"v_lshlrev_b32 {v(vST)}, 4, v41\nv_lshl_add_u32 {v(vST)}, v43, 3, {v(vST)}")
a(f"v_lshrrev_b32 v42, 5, v0\nv_and_b32 v43, 3, v40\nv_lshlrev_b32 {v(vX3)}, 11, v42\nv_lshl_add_u32 {v(vX3)}, v43, 8, {v(vX3)}\nv_lshl_add_u32 {v(vX3)}, v41, 4, {v(vX3)}")
a(f"v_lshlrev_b32 {v(vOUT)}, 10, v41\nv_lshl_add_u32 {v(vOUT)}, v40, 4, {v(vOUT)}")
a(f"s_mul_i32 s65, {s(sW)}, {HZW}\ns_add_u32 s65, s65, {HZ}")
a(f"v_add_u32 {v(vHR)}, s65, {v(vL16)}")
sYL, sHZ = 64, 65
sHS, sHMAX = 56, 57
a(f"s_mul_i32 s12, {s(sCX)}, 88\ns_mul_i32 s13, {s(sW)}, 22\ns_add_u32 s12, s12, s13\ns_lshl_b32 s12, s12, 10\ns_add_u32 {s(sHS)}, s12, {s(sAR)}")
a(f"s_cmp_eq_u32 {s(sW)}, 3\ns_cselect_b32 {s(sHMAX)}, 19, 21\ns_lshl_b32 {s(sHMAX)}, {s(sHMAX)}, 10")

def prep(st):
    lwait(C_XL + 4 * st, 4, vMISC, T0)
    a(f"s_lshl_b32 s11, {s(sC)}, 15\ns_lshl_b32 s12, {s(sJ)}, 12\ns_add_u32 s11, s11, s12\ns_add_u32 s11, s11, {YT+st*0x100000}")
    a(f"s_mov_b32 m0, {s(sYL)}")
    a(f"buffer_load_dwordx4 {v(vYS)}, {WS}, s11 offen sc1 lds")
    a(f"v_add_u32 {v(T0)}, s12, {v(vXS)}")
    for hf in range(2):
        a(f"ds_read_b64_tr_b16 {v(XRES+4*st+2*hf,2)}, {v(T0)} offset:{XR[st]+256*hf}")
    for i in range(16):
        a(f"ds_read_b64_tr_b16 {v(ACC2+2*i,2)}, {v(vXS)} offset:{XR[st]+(i>>1)*4096+(i&1)*256}")
    for i in range(32):
        if i % 8 == 0: a(f"s_waitcnt lgkmcnt({12-i//2})")
        c1 = v(T0 + 2 * (i & 1)) if i >= 2 else "0"
        c2 = v(T1 + 2 * (i & 1)) if i >= 2 else "0"
        a(f"v_dot2_f32_bf16 {v(T0+2*(i&1))}, {v(ACC2+i)}, {s(sONES)}, {c1}")
        a(f"v_dot2_f32_bf16 {v(T1+2*(i&1))}, {v(ACC2+i)}, {v(ACC2+i)}, {c2}")
    sig(C_XFREE + 4 * st, vMISC, vONE)
    a(f"v_add_f32 {v(T0)}, {v(T0)}, {v(T2)}\nv_add_f32 {v(T1)}, {v(T1)}, {v(T3)}")
    allreduce_pair(T0, T1, T2); unmix(T0, T1); rstd(T0, T1, sINV, sEPS)
    a(f"v_mov_b32 {v(vR[st])}, {v(T1)}")
def y_read(st):
    for hf in range(2):
        a(f"ds_read_b64_tr_b16 {v(YR+4*st+2*hf,2)}, {v(vYR)} offset:{64*hf}")
    a("s_waitcnt lgkmcnt(0)")

def pub_stats(P, base, st):
    for k in range(4):
        a(f"v_dot2_f32_bf16 {v(T0)}, {v(P+k)}, {s(sONES)}, {v(T0) if k else '0'}")
        a(f"v_dot2_f32_bf16 {v(T2)}, {v(P+k)}, {v(P+k)}, {v(T2) if k else '0'}")
    a(f"s_lshl_b32 s11, {s(sC)}, 2\ns_add_u32 s11, s11, {s(sW)}\ns_lshl_b32 s11, s11, 10\ns_lshl_b32 s12, {s(sJ)}, 7\ns_add_u32 s11, s11, s12\ns_add_u32 s11, s11, {base+st*0x20000}")
    allreduce_pair(T0, T2, T3)
    a(f"v_mov_b32 {v(T1)}, {v(vTAG)}")
    a("s_mov_b64 exec, 0xff00ff")
    lstore(lambda m: a(f"buffer_store_dwordx2 {v(T0,2)}, {v(vST)}, {WS}, s11 offen {m}"))
    a("s_mov_b64 exec, -1")

def get_stats(base, st, pre=None):
    a(f"s_lshl_b32 s13, {s(sC)}, 2\ns_add_u32 s13, s13, {s(sW)}\ns_lshl_b32 s13, s13, 10\ns_add_u32 s13, s13, {base+st*0x20000}")
    L, D, L2 = a.newlabel("GS"), a.newlabel("GD"), a.newlabel("GP")
    if pre:
        a(f"buffer_load_dwordx4 {v(T0,4)}, {v(vL16)}, {WS}, s13 offen sc1\ns_waitcnt vmcnt(0)")
        pre()
        a(f"s_branch {L2}")
    a.label(L)
    a(f"buffer_load_dwordx4 {v(T0,4)}, {v(vL16)}, {WS}, s13 offen sc1\ns_waitcnt vmcnt(0)")
    a.label(L2)
    a(f"v_xor_b32 {v(T1)}, {s(sTAG)}, {v(T1)}\nv_xor_b32 {v(T3)}, {s(sTAG)}, {v(T3)}\nv_or_b32 {v(T1)}, {v(T1)}, {v(T3)}")
    a(f"v_cmp_ne_u32 vcc, 0, {v(T1)}")
    a(f"s_cbranch_vccz {D}")
    timeout(D)
    a(f"s_branch {L}")
    a.label(D)
    allreduce_pair(T0, T2, T3); unmix(T0, T2); rstd(T0, T2, sINV, sEPS)

def gemm2(layer, st, pre=None):
    ls = layer * 2 + st
    a(f"s_lshl_b32 s11, {s(sC)}, 2\ns_add_u32 s11, s11, {s(sW)}\ns_lshl_b32 s11, s11, 7\ns_add_u32 s14, s11, {FLAGH+ls*0x4000}")
    a(f"s_add_u32 s66, {s(sHS)}, {st*4*88*1024}\ns_lshl_b32 s67, {s(sROT)}, 10")
    poll(vPH, "s14", T0, pre)
    stamp(f"H{ls} rdy", (0, 1))
    a(f"s_mov_b32 m0, {s(sHZ)}")
    vq = Q("vmcnt")
    def dma(i):
        a(f"s_min_u32 s12, s67, {s(sHMAX)}\ns_add_u32 s12, s12, s66")
        a(f"buffer_load_dwordx4 {v(vL16)}, {WS}, s12 offen sc1 lds"); vq.issue(i)
        if i < 21: a(f"s_add_u32 m0, m0, 1024\ns_add_u32 s67, s67, 1024\ns_cmp_eq_u32 s67, {22*1024}\ns_cselect_b32 s67, 0, s67")
    HD = opt("hd", 8)
    for i in range(HD): dma(i)
    lg = Q("lgkmcnt")
    def rd(k):
        vq.wait(k)
        a(f"ds_read_b128 {v(RING+4*(k%3),4)}, {v(vHR)} offset:{1024*k}"); lg.issue(k)
        if k + HD < 22: dma(k + HD)
    rd(0); rd(1)
    for k in range(22):
        if k + 2 < 22: rd(k + 2)
        lg.wait(k)
        for ch in range(2):
            c = v(ACC2 + 16 * ch, 16) if k else "0"
            a(f"v_mfma_f32_32x32x16_bf16 {v(ACC2+16*ch,16)}, {v(W2R+4*(2*k+ch),4)}, {v(RING+4*(k%3),4)}, {c}")
    if ls in (0, 3): stamp(f"mm{ls} done", (1,))
    lwait(C_XFREE + 4 * ls, 8 if layer == 0 else 4, vMISC, T0)
    for cg in range(8):
        K = (cg | (((cg >> 1) & 1) << 3)) * 16
        a(f"v_xor_b32 {v(T0+(cg&3))}, {K}, {v(vEW)}")
        a(f"ds_write_b128 {v(T0+(cg&3))}, {v(ACC2+4*cg,4)} offset:{XR[st]}")
    sig(C_EX + 4 * ls, vMISC, vONE)
    XF = 40
    for k in range(8): unpack(XF + k, XRES + 4 * st + (k >> 1), k & 1)
    a(f"v_xor_b32 {v(T1)}, 128, {v(vER)}")
    lwait(C_EX + 4 * ls, 4, vMISC, T0)
    if ls in (0, 3): stamp(f"ex{ls} sync", (1,))
    for src in range(4):
        a(f"ds_read_b128 {v(ACC2+8*src,4)}, {v(vER)} offset:{XR[st]+8192*src}")
        a(f"ds_read_b128 {v(ACC2+8*src+4,4)}, {v(T1)} offset:{XR[st]+8192*src}")
    a("s_waitcnt lgkmcnt(4)")
    for k in range(8): a(f"v_add_f32 {v(ACC2+k)}, {v(ACC2+k)}, {v(ACC2+8+k)}")
    a("s_waitcnt lgkmcnt(0)")
    if layer == 0: sig(C_EXDONE + 4 * st, vMISC, vONE)
    for k in range(8): a(f"v_add_f32 {v(ACC2+16+k)}, {v(ACC2+16+k)}, {v(ACC2+24+k)}")
    for k in range(8): a(f"v_add_f32 {v(ACC2+k)}, {v(ACC2+k)}, {v(ACC2+16+k)}")
    for k in range(8): a(f"v_fma_f32 {v(XF+k)}, {v(ACC2+k)}, {v(vR[st])}, {v(XF+k)}")
    for k in range(4): a(f"v_cvt_pk_bf16_f32 {v(XRES+4*st+k)}, {v(XF+2*k)}, {v(XF+2*k+1)}")
    if layer == 0:
        pub_stats(XRES + 4 * st, ST2, st)
    else:
        a(f"s_lshl_b32 s11, {s(sC)}, 15\ns_lshl_b32 s12, {s(sW)}, 13\ns_add_u32 s11, s11, s12\ns_lshl_b32 s12, {s(sJ)}, 7\ns_add_u32 s11, s11, s12\ns_add_u32 s11, s11, {st*0x100000}")
        a(f"buffer_store_dwordx4 {v(XRES+4*st,4)}, {v(vOUT)}, {s(rO,4)}, s11 offen sc1")

def pflag(base):
    a(f"s_lshr_b32 s12, {s(sJ)}, 1\ns_lshl_b32 s11, {s(sC)}, 2\ns_add_u32 s11, s11, s12\ns_lshl_b32 s11, s11, 3\ns_and_b32 s12, {s(sJ)}, 1\ns_add_u32 s11, s11, s12")
    a(f"s_lshl_b32 s11, s11, 2\ns_add_u32 s11, s11, {s(sW)}\ns_lshl_b32 s11, s11, 2\ns_add_u32 s11, s11, {base}")
    flag("s11", vZERO, vTAG, local=True)
def x3flag(st): pflag(FLAGX3 + st * 0x4000)

def mk_x3(st, pre=None):
    XF, YF = ACC2, ACC2 + 8
    for k in range(8):
        unpack(XF + k, XRES + 4 * st + (k >> 1), k & 1)
        unpack(YF + k, YR + 4 * st + (k >> 1), k & 1)
    get_stats(ST2, st, pre)
    a(f"v_mul_f32 {v(T0)}, -{v(T0)}, {v(T2)}")
    for k in range(8): a(f"v_fma_f32 {v(ACC2+16+k)}, {v(XF+k)}, {v(T2)}, {v(T0)}")
    for k in range(8): a(f"v_fma_f32 {v(XF+k)}, {v(ACC2+16+k)}, {v(YF+k)}, {v(XF+k)}")
    for k in range(4): a(f"v_cvt_pk_bf16_f32 {v(XRES+4*st+k)}, {v(XF+2*k)}, {v(XF+2*k+1)}")
    a(f"s_lshl_b32 s11, {s(sCX)}, 15\ns_lshl_b32 s12, {s(sJ)}, 12\ns_add_u32 s11, s11, s12\ns_lshr_b32 s12, {s(sW)}, 1\ns_lshl_b32 s12, s12, 10\ns_add_u32 s11, s11, s12")
    a(f"s_and_b32 s12, {s(sW)}, 1\ns_lshl_b32 s12, s12, 7\ns_add_u32 s11, s11, s12\ns_add_u32 s11, s11, {s(sAR)}\ns_add_u32 s11, s11, {AX3+st*0x20000}")
    lstore(lambda m: a(f"buffer_store_dwordx4 {v(XRES+4*st,4)}, {v(vX3)}, {WS}, s11 offen {m}"))
    pub_stats(XRES + 4 * st, ST3, st)

lwait(C_CONV, 4, vMISC, T0)
prep(0)
gemm2(0, 0, pre=lambda: y_read(0))
stamp("st2A pub", (1,))
prep(1)
stamp("prepB", (1,))
mk_x3(0, pre=lambda: y_read(1))
stamp("x3A st", (0, 1))
gemm2(0, 1, pre=lambda: x3flag(0))
mk_x3(1)
get_stats(ST3, 0, pre=lambda: x3flag(1))
a(f"v_mov_b32 {v(vR[0])}, {v(T2)}")
gemm2(1, 0)
get_stats(ST3, 1)
a(f"v_mov_b32 {v(vR[1])}, {v(T2)}")
gemm2(1, 1)
stamp("out st", (1,))
Le = a.newlabel("EP")
a(f"s_or_b32 s11, s2, {s(sW)}\ns_cmp_lg_u32 s11, 0\ns_cbranch_scc1 {Le}")
a("s_mov_b64 exec, 1")
a(f"buffer_store_dword {v(vTAG)}, {v(vZERO)}, {WS}, 0 offen sc1")
a("s_mov_b64 exec, -1")
a.label(Le)
finish(0)

a.raw(".p2align 6")
a.label("L_G1")
ROLE[0] = 1
a.hist = []
vMISC, vONE, vTAG, vZERO, vL16 = 3, 4, 5, 6, 7
CS, RING1, ACC1, W1R = 12, 24, 40, 64
sS3 = 56
sINV, sEPS, sONES = 61, 62, 63
a(f"v_mov_b32 {v(vMISC)}, {MISC}\nv_mov_b32 {v(vONE)}, 1\nv_mov_b32 {v(vZERO)}, 0")
a(f"v_lshlrev_b32 {v(vL16)}, 4, v0")
a("v_lshrrev_b32 v12, 5, v0\nv_and_b32 v13, 31, v0\nv_lshlrev_b32 v8, 10, v12\nv_lshl_add_u32 v8, v13, 4, v8")
a(f"s_lshl_b32 s11, s2, 13\ns_lshl_b32 s12, {s(sW)}, 11\ns_add_u32 s11, s11, s12")
a("v_add_u32 v8, s11, v8")
a(f"s_lshl_b32 s57, {s(sW)}, 5\ns_add_u32 s57, s57, {s(sY)}")
a(f"s_lshl_b32 s12, s57, 14\ns_lshl_b32 s13, {s(sX)}, 7\ns_add_u32 s58, s12, s13")
a("v_lshrrev_b32 v12, 3, v0\nv_and_b32 v13, 7, v0\nv_lshlrev_b32 v9, 10, v12\nv_lshl_add_u32 v9, v13, 4, v9")
a(f"s_lshl_b32 s60, {s(sW)}, 11\ns_add_u32 s60, s60, {W2S}\ns_mov_b32 m0, s60")
a("s_waitcnt lgkmcnt(0)")
after_kernarg()
Li = a.newlabel("INIT")
a(f"s_cmp_lg_u32 {s(sW)}, 0\ns_cbranch_scc1 {Li}")
a("v_cmp_gt_u32 vcc, 8, v0")
a("v_cndmask_b32 v12, -1, v6, vcc")
a("v_mov_b32 v13, v12\nv_mov_b32 v14, v12\nv_mov_b32 v15, v12")
a(f"v_add_u32 v16, {MISC}, {v(vL16)}")
a("ds_write_b128 v16, v[12:15]")
a.label(Li)
srd(rB, pW2, 1376 * 1024)
vm = Q("vmcnt")
QR = 40
for k in range(2):
    a(f"global_load_dwordx4 {v(QR+4*k,4)}, v8, {s(pQ,2)} offset:{512*k}"); vm.issue("q")
a(f"buffer_load_dwordx4 v9, {s(rB,4)}, s58 offen lds"); vm.issue("w2")
a("s_add_u32 m0, m0, 1024\ns_add_u32 s58, s58, 8192")
a(f"buffer_load_dwordx4 v9, {s(rB,4)}, s58 offen lds"); vm.issue("w2")
a(f"s_load_dword {s(sTAG)}, {s(pWS,2)}, 0")
srd(rA, pW1, 512 * 2752)
srd(rWS, pWS, 0x10000000)
WA = 48
a(f"s_movk_i32 s13, 2979\ns_movk_i32 s14, 2752\ns_lshl_b32 s11, {s(sW)}, 6")
a("v_add_u32 v12, s11, v0")
for k in range(11):
    a("v_mul_lo_u32 v13, v12, s13\nv_lshrrev_b32 v13, 16, v13")
    a("v_mul_u32_u24 v14, 22, v13\nv_sub_u32 v14, v12, v14")
    a(f"v_mul_u32_u24 {v(WA+k)}, s14, v13\nv_lshl_add_u32 {v(WA+k)}, v14, 4, {v(WA+k)}")
    if k < 10: a("v_add_u32 v12, 256, v12")
a(f"s_mul_i32 s11, {s(sJ)}, 11\ns_min_u32 s11, s11, 75\ns_lshl_b32 s69, s11, 5\ns_mul_i32 s12, {s(sW)}, 3\ns_add_u32 {s(sS3)}, s11, s12")
a(f"s_lshl_b32 s59, {s(sW)}, 13")
a(f"s_lshl_b32 s68, {s(sW)}, 10")
a(f"s_mov_b32 {s(sINV)}, 0x3b000000\ns_mov_b32 {s(sEPS)}, 0x3727c5ac\ns_mov_b32 {s(sONES)}, 0x3f803f80")
a("s_waitcnt lgkmcnt(0)")
a(f"s_mul_i32 {s(sTAG)}, {s(sTAG)}, 1664525\ns_add_u32 {s(sTAG)}, {s(sTAG)}, 1013904223")
a("s_barrier")
ZONE = [STG, 0]
def w1_issue(qi, k0, k1):
    a(f"s_add_u32 s11, {s(sCX)}, {qi}\ns_and_b32 s11, s11, 3\ns_mul_i32 s11, s11, {128*2752}\ns_add_u32 s11, s11, s69")
    for k in range(k0, k1):
        a(f"s_add_u32 m0, s68, {ZONE[qi&1]+4096*k}")
        a(f"buffer_load_dwordx4 {v(WA+k)}, {s(rA,4)}, s11 offen lds"); vm.issue(f"b{qi}")
N0 = opt("n0", 5)
w1_issue(0, 0, N0)
a(f"v_mov_b32 {v(vTAG)}, {s(sTAG)}")
stamp("barrier")
vm.wait("q")
for k in range(8):
    a(f"v_dot2_f32_bf16 v12, {v(QR+k)}, {s(sONES)}, {'v12' if k else '0'}")
    a(f"v_dot2_f32_bf16 v13, {v(QR+k)}, {v(QR+k)}, {'v13' if k else '0'}")
for m in ("quad_perm:[1,0,3,2]", "quad_perm:[2,3,0,1]", "row_half_mirror", "row_mirror", "row_bcast:15 row_mask:0xa"):
    a(f"v_add_f32 v12, v12, v12 {m}")
    a(f"v_add_f32 v13, v13, v13 {m}")
a(f"v_mul_f32 v12, {s(sINV)}, v12\nv_mul_f32 v13, {s(sINV)}, v13")
a("v_fma_f32 v13, -v12, v12, v13\nv_max_f32 v13, 0, v13")
a("v_cvt_pk_bf16_f32 v13, v13, v13\nv_lshlrev_b32 v13, 16, v13")
a(f"v_add_f32 v13, {s(sEPS)}, v13")
a("v_cvt_pk_bf16_f32 v13, v13, v13\nv_lshlrev_b32 v13, 16, v13")
a("v_sqrt_f32 v13, v13")
a("v_cvt_pk_bf16_f32 v12, v12, v13")
a(f"v_mov_b32 v13, {v(vTAG)}")
a("v_lshrrev_b32 v14, 5, v0\nv_lshlrev_b32 v14, 3, v14")
a(f"s_lshl_b32 s11, s2, 6\ns_lshl_b32 s12, {s(sW)}, 4\ns_add_u32 s11, s11, s12\ns_add_u32 s11, s11, {QST}")
a("s_mov_b32 exec_lo, 0x80000000\ns_mov_b32 exec_hi, 0x80000000")
a(f"buffer_store_dwordx2 v[12:13], v14, {WS}, s11 offen sc1"); vm.issue("st")
a("s_mov_b64 exec, -1")
a("v_and_b32 v12, 3, v0\nv_bfe_u32 v13, v0, 2, 2\nv_bfe_u32 v14, v0, 4, 1\nv_lshrrev_b32 v15, 5, v0")
a("v_lshl_add_u32 v15, v15, 3, v13\nv_lshlrev_b32 v15, 7, v15\nv_lshl_add_u32 v15, v14, 5, v15\nv_lshl_add_u32 v15, v12, 3, v15")
a("v_add_u32 v15, s60, v15")
a(f"s_mul_i32 s11, {s(sW)}, 96\ns_movk_i32 s12, 352")
a("v_lshl_add_u32 v10, v2, 3, v13\nv_mul_u32_u24 v10, s12, v10\nv_lshl_add_u32 v10, v12, 3, v10\nv_add_u32 v10, s11, v10")
a(f"v_add_u32 v11, {STG}, v10")
vm.wait("w2")
for ch in range(2):
    for hf in range(2):
        a(f"ds_read_b64_tr_b16 {v(QR+4*ch+2*hf,2)}, v15 offset:{64*ch+512*hf}")
a(f"s_mul_i32 s11, {s(sX)}, 176\ns_add_u32 s11, s11, s57\ns_lshl_b32 s11, s11, 10\ns_add_u32 s11, s11, {W2F}")
a(f"s_cmp_lt_u32 s57, 88\ns_cselect_b32 s11, s11, {OOB}\ns_add_u32 s12, s11, {88*1024}")
a("s_waitcnt lgkmcnt(0)")
a(f"buffer_store_dwordx4 {v(QR,4)}, {v(vL16)}, {WS}, s11 offen sc1"); vm.issue("st")
a(f"buffer_store_dwordx4 {v(QR+4,4)}, {v(vL16)}, {WS}, s12 offen sc1"); vm.issue("st")
if opt("pause", 1): lwait(C_UQI, 4, vMISC, 12)
w1_issue(0, N0, 11)
w1_issue(1, 0, 11)
def w1frag(pos, e): return W1R + (pos * 3 + e) * 4
for qi in range(4):
    vm.wait(f"b{qi}")
    if qi == 0:
        a(f"s_lshl_b32 s11, {s(sX)}, 7\ns_add_u32 s11, s11, s57\ns_lshl_b32 s11, s11, 7\ns_add_u32 s11, s11, {FLAGW}")
        flag("s11", vZERO, vTAG); vm.issue("fl")
    sig(C_WL + 4 * qi, vMISC, vONE)
    lwait(C_WL + 4 * qi, 4, vMISC, 12)
    va = 11 if (qi & 1) == 0 else 10
    for p in range(4):
        for e in range(3):
            for hf in range(2):
                a(f"ds_read_b64_tr_b16 {v(w1frag(4*qi+p,e)+2*hf,2)}, {v(va)} offset:{11264*p+32*e+1408*hf}")
    sig(C_WF + 4 * qi, vMISC, vONE)
    if qi + 2 < 4:
        lwait(C_WF + 4 * qi, 4, vMISC, 12)
        w1_issue(qi + 2, 0, 11)
mode_addr(12)
mode_load(13, 12)
lwait(C_WF + 12, 4, vMISC, 12)
stamp("W1 loaded")
Lo = a.newlabel("ONES")
a(f"s_cmp_lg_u32 {s(sW)}, 3\ns_cbranch_scc1 {Lo}")
for pos in range(16):
    for k in range(4): a(f"v_mov_b32 {v(w1frag(pos,2)+k)}, {s(sONES)}")
a.label(Lo)
vT0, vT1, vSX, vCUR0, vCUR1, vPF = 8, 9, 10, 11, 1, 2
a("v_and_b32 v28, 3, v0\nv_bfe_u32 v29, v0, 2, 1\nv_bfe_u32 v30, v0, 3, 1\nv_and_b32 v31, 1, v2")
a("v_lshl_add_u32 v28, v31, 2, v28")
a(f"v_lshlrev_b32 {v(vT0)}, 9, v2\nv_lshl_add_u32 {v(vT0)}, v30, 7, {v(vT0)}\nv_lshl_add_u32 {v(vT0)}, v28, 4, {v(vT0)}\nv_lshl_add_u32 {v(vT0)}, v29, 3, {v(vT0)}")
a(f"v_xor_b32 {v(vT1)}, 64, {v(vT0)}")
a(f"v_lshlrev_b32 {v(vSX)}, 2, v1\nv_add_u32 {v(vSX)}, {MISC+SX}, {v(vSX)}")
for k in range(4):
    a(f"s_add_u32 s11, {s(sCX)}, {k}\ns_and_b32 s11, s11, 3\ns_lshl_b32 {s(64+k)}, s11, 13")
a("s_waitcnt vmcnt(0)")
mode_set(13)
def colsum():
    for k in range(4): a(f"v_mov_b32 {v(RING1+4+k)}, {s(sONES)}")
    for pos in range(16):
        for e in range(3):
            a(f"v_mfma_f32_16x16x32_bf16 {v(CS+4*e,4)}, {v(w1frag(pos,e),4)}, {v(RING1+4,4)}, {v(CS+4*e,4) if pos else '0'}")
    a("s_mov_b32 s11, 0xbb000000")
    for k in range(12): a(f"v_mul_f32 {v(CS+k)}, s11, {v(CS+k)}")
stamp("cs done")

def hflag(ls): pflag(FLAGH + ls * 0x4000)

def gemm1(layer, st, pre=None):
    ls = layer * 2 + st
    TT = RING1
    if layer == 0:
        a(f"v_lshlrev_b32 {v(vPF)}, 7, v0")
        a(f"s_lshr_b32 s12, {s(sC)}, 3\ns_lshl_b32 s12, s12, 8\ns_lshl_b32 s13, {s(sW)}, 6\ns_add_u32 s12, s12, s13\ns_lshl_b32 s12, s12, 7\ns_add_u32 s14, s12, {FLAGX1+st*0x20000}")
        a(f"s_lshl_b32 s12, {s(sC)}, 15\ns_add_u32 s12, s12, s59\ns_add_u32 s68, s12, {X1T+st*0x100000}")
    else:
        a(f"v_and_b32 {v(vPF)}, 7, v0\nv_lshlrev_b32 {v(vPF)}, 2, {v(vPF)}")
        a(f"s_lshl_b32 s12, {s(sC)}, 2\ns_add_u32 s12, s12, {s(sW)}\ns_lshl_b32 s12, s12, 7\ns_add_u32 s14, s12, {FLAGX3+st*0x4000}")
        a(f"s_lshl_b32 s12, {s(sCX)}, 15\ns_add_u32 s12, s12, s59\ns_add_u32 s12, s12, {s(sAR)}\ns_add_u32 s68, s12, {AX3+st*0x20000}")
    if layer == 1:
        if pre:
            a("s_waitcnt vmcnt(0)"); pre(); pre = None
        lwait(C_EXDONE + 4 * st, 4, vMISC, TT)
    elif pre:
        a("s_waitcnt vmcnt(0)"); pre(); pre = None
    poll(vPF, "s14", TT, pre)
    stamp(f"X{ls} rdy", (0, 1) if ls in (0, 3) else (0,))
    a(f"s_add_u32 m0, s59, {XR[st]}")
    for i in range(8):
        a(f"buffer_load_dwordx4 {v(vL16)}, {WS}, s68 offen offset:{(i&3)*1024} sc1 lds")
        if i == 3: a("s_add_u32 s68, s68, 4096\ns_add_u32 m0, m0, 4096")
    if ls == 0:
        sig(C_XI, vMISC, vONE)
        colsum()
    a(f"s_mul_i32 s12, {s(sCX)}, 88\ns_add_u32 s12, s12, {s(sS3)}\ns_lshl_b32 s12, s12, 10\ns_add_u32 s12, s12, {s(sAR)}\ns_add_u32 s68, s12, {st*4*88*1024}")
    a(f"s_cmp_eq_u32 {s(sW)}, 3\ns_cselect_b32 s69, {OOB}, s68")
    def setchunk(c):
        if layer == 0:
            a(f"v_add_u32 {v(vCUR0)}, {s(64+c)}, {v(vT0)}\nv_add_u32 {v(vCUR1)}, {s(64+c)}, {v(vT1)}")
        else:
            a(f"v_add_u32 {v(vCUR0)}, {s(64+c)}, {v(vL16)}")
    setchunk(0)
    if ls in (0, 3): stamp(f"X{ls} pre", (1,))
    a("s_waitcnt vmcnt(0)")
    if ls in (0, 3): stamp(f"X{ls} own", (1,))
    sig(C_XL + 4 * ls, vMISC, vONE)
    lwait(C_XL + 4 * ls, 4, vMISC, vPF)
    if ls in (0, 3): stamp(f"X{ls} all", (1,))
    lg = Q("lgkmcnt")
    def rd(f):
        pos, t = f >> 1, f & 1
        if f % 8 == 0 and f: setchunk(f // 8)
        dst = RING1 + 4 * (f & 3)
        if layer == 0:
            for hf in range(2):
                a(f"ds_read_b64_tr_b16 {v(dst+2*hf,2)}, {v(vCUR1 if t else vCUR0)} offset:{XR[st]+(pos&3)*2048+256*hf}"); lg.issue(f)
        else:
            a(f"ds_read_b128 {v(dst,4)}, {v(vCUR0)} offset:{XR[st]+((pos&3)*2+t)*1024}"); lg.issue(f)
    def mm(f, e):
        pos, t = f >> 1, f & 1
        acc = v(ACC1 + 8 * e + 4 * t, 4)
        a(f"v_mfma_f32_16x16x32_bf16 {acc}, {v(w1frag(pos,e),4)}, {v(RING1+4*(f&3),4)}, {acc if pos else '0'}")
    if opt("prio", 0): a("s_setprio 2")
    for f in range(4): rd(f)
    for f in range(28):
        lg.wait(f)
        for e in range(3): mm(f, e)
        rd(f + 4)
    for f in range(28, 32):
        lg.wait(f); mm(f, 2)
    sig(C_XFREE + 4 * ls, vMISC, vONE)
    for f in (28, 29):
        for e in range(2): mm(f, e)
    Ls = a.newlabel("SXW")
    a(f"s_cmp_lg_u32 {s(sW)}, 3\ns_cbranch_scc1 {Ls}")
    a(f"ds_write2_b32 {v(vSX)}, {v(ACC1+16)}, {v(ACC1+20)} offset0:{32*ls} offset1:{32*ls+16}")
    a.label(Ls)
    for f in (30, 31):
        for e in range(2): mm(f, e)
    if ls in (0, 3): stamp(f"mm{ls} done", (1,))
    L, D = a.newlabel("SXR"), a.newlabel("SXD")
    a.label(L)
    a(f"ds_read2_b32 {v(RING1,2)}, {v(vSX)} offset0:{32*ls} offset1:{32*ls+16}")
    a("s_waitcnt lgkmcnt(0)")
    a(f"v_max_u32 {v(RING1+2)}, {v(RING1)}, {v(RING1+1)}")
    a(f"v_cmp_eq_u32 vcc, -1, {v(RING1+2)}")
    a(f"s_cbranch_vccz {D}")
    timeout(D)
    a(f"s_branch {L}")
    a.label(D)
    for e in (2, 0, 1):
        P = RING1 + 4 + 4 * e
        for t in range(2):
            for r in range(4):
                x = ACC1 + 8 * e + 4 * t + r
                a(f"v_fma_f32 {v(x)}, {v(RING1+t)}, {v(CS+4*e+r)}, {v(x)}")
        for k in range(4): a(f"v_cvt_pk_bf16_f32 {v(P+k)}, {v(ACC1+8*e+2*k)}, {v(ACC1+8*e+2*k+1)}")
        for k in range(4): a(f"v_pk_max_i16 {v(P+k)}, {v(P+k)}, 0")
        a(f"v_permlane16_swap_b32 {v(P)}, {v(P+2)}")
        a(f"v_permlane16_swap_b32 {v(P+1)}, {v(P+3)}")
        lstore(lambda m: a(f"buffer_store_dwordx4 {v(P,4)}, {v(vL16)}, {WS}, {'s69' if e == 2 else 's68'} offen offset:{1024*e} {m}"))
    if opt("prio", 0): a("s_setprio 0")
    stamp(f"H{ls} st", (0, 1) if ls in (0, 3) else (0,))

gemm1(0, 0)
gemm1(0, 1, pre=lambda: hflag(0))
gemm1(1, 0, pre=lambda: hflag(1))
gemm1(1, 1, pre=lambda: hflag(2))
a("s_waitcnt vmcnt(0)"); hflag(3)
finish(1)
a.label("L_END")
a("s_endpgm")
a.label("L_CODE_END")
a.raw(f""".section .rodata,"a"
.p2align 6
.amdhsa_kernel {NAME}_kernel
  .amdhsa_next_free_vgpr 256
  .amdhsa_next_free_sgpr 102
  .amdhsa_accum_offset 256
  .amdhsa_group_segment_fixed_size 0
  .amdhsa_kernarg_size 96
  .amdhsa_user_sgpr_count 2
  .amdhsa_user_sgpr_kernarg_segment_ptr 1
  .amdhsa_system_sgpr_workgroup_id_x 1
.end_amdhsa_kernel""")
open(OUT, "w").write(a.text())
import json
json.dump(STAMPS, open(OUT + ".json", "w"))
print("wrote", OUT, "lines", len(a.lines), "auto nops", a.nops)
```
